```python
import torch

def _softmax(x, axis=-1):
    return torch.softmax(x, dim=axis)
def _gelu(x):
    return torch.nn.functional.gelu(x, approximate="tanh")
def _silu(x):
    return torch.nn.functional.silu(x)
def _sigmoid(x):
    return torch.sigmoid(x)
def _layernorm(x, axis=-1, eps=1e-5):
    m = x.mean(dim=axis, keepdim=True)
    v = x.var(dim=axis, keepdim=True, unbiased=False)
    return (x - m) / torch.sqrt(v + eps)
def _scatter_add(tgt, idx, src, axis=0):
    return tgt.clone().index_add_(axis, idx, src)
def _segment_sum(src, seg, n):
    out = torch.zeros((n,) + src.shape[1:], dtype=src.dtype)
    return out.index_add_(0, seg, src)
def _pad(x, pw):
    flat = tuple(v for pair in reversed(pw) for v in pair)
    return torch.nn.functional.pad(x, flat)

kernel_name = 'standalone__paged_block_table_kv_radixattention__sampling'

def setup_inputs():

    _w = (lambda a: (lambda t: t.to(torch.bfloat16) if t.is_floating_point() else t)(torch.as_tensor(a)))
    B, H, Hkv, Dh = 32, 16, 8, 256
    Lk = 2048
    bs = 16
    nb = max(2, Lk // bs)
    P = max(1, nb // 2)
    n_phys = P + B * (nb - P)
    shared = torch.arange(P, dtype=torch.int64)
    priv = P + torch.arange(B * (nb - P), dtype=torch.int64).reshape(B, nb - P)
    bt = torch.cat([torch.tile(shared[None, :], (B, 1)), priv], dim=1)
    ctx = nb * bs - (torch.arange(1, B + 1, dtype=torch.int64) * 2654435761) % max(1, (nb * bs - P * bs) // 2)
    return {
        "q": _w((lambda *s: torch.randn(*s, dtype=torch.bfloat16) * 0.8)(B, H, Dh)),
        "k_cache": _w((lambda *s: torch.randn(*s, dtype=torch.bfloat16) * 0.8)(n_phys, bs, Hkv, Dh)),
        "v_cache": _w((lambda *s: torch.randn(*s, dtype=torch.bfloat16) * 0.05)(n_phys, bs, Hkv, Dh)),
        "block_table": _w(bt.to(torch.int64)),
        "ctx_lens": _w(torch.as_tensor(ctx).to(torch.int64)),
    }

def reference(q, k_cache, v_cache, block_table, ctx_lens):
    B, H, Dh = q.shape
    n_phys, bs, Hkv, _ = k_cache.shape
    nb = block_table.shape[1]
    Lk = nb * bs
    rep = H // Hkv
    k = k_cache[block_table].reshape(B, Lk, Hkv, Dh)
    v = v_cache[block_table].reshape(B, Lk, Hkv, Dh)
    k = (lambda x, n, axis: torch.repeat_interleave(x, n, dim=axis))(k, rep, axis=2)
    v = (lambda x, n, axis: torch.repeat_interleave(x, n, dim=axis))(v, rep, axis=2)
    scores = torch.einsum("bhd,bkhd->bhk", q, k) * (Dh ** -0.5)
    pos = torch.arange(Lk)
    valid = pos[None, :] < ctx_lens[:, None]
    scores = torch.where(valid[:, None, :], scores, -1e9)
    p = _softmax(scores, axis=-1)
    return torch.einsum("bhk,bkhd->bhd", p, v)
```

```python
import struct
import sys

NAME = "standalone__paged_block_table_kv_radixattention__sampling_kernel"
OUT = "standalone__paged_block_table_kv_radixattention__sampling.s"

KV_BYTES = 2112 * 65536
WS_BYTES = 553648128
NA = 128
NB = 256
LDS_O = 1024
LDS_ML = 0
LDS_FML = 512
LDS_FLAG = 640
LDS_VERD = 672
LDS_BYTES = 65536 + 1024
SLOT = 0x8000
BSLOT_BASE = 0x400000
BSLOT = 0x1000


def f2u(x):
    return struct.unpack("<I", struct.pack("<f", x))[0]


SCALE = f2u(0.0625 * 1.4426950408889634)
NEG_MASK = f2u(-3.0e38)
M_INIT = f2u(-1.0e30)

L = []


def e(s=""):
    L.append("    " + s if s and not s.endswith(":") else s)


V_LANE = 0
V_OFFK = 1
V_OFFV = 2
V_PHYS = 3
V_CTX = 4
V_M = 5
V_L = 6
V_SC = 7
V_S = 8
V_T0 = 12
V_T1 = 13
V_P = 14
V_VT = 16
V_Q = 32
V_ACC = 64
V_K = [128, 192]
V_V = [160, 224]
S_K, S_V, S_Q, S_BT, S_CTX, S_OUT, S_DBG, S_WS = 20, 24, 28, 32, 36, 40, 44, 48
S_W, S_KVH, S_B, S_GRP, S_CHUNK, S_ISA = 52, 53, 54, 55, 56, 57
S_M = 58
S_MASK, S_N = 62, 63
S_SOFF = [64, 65]
S_J16 = [66, 67]
S_T = 68
S_SELLO, S_SELHI = 70, 71
S_VO = 72
S_KVH512 = 76
S_ACT = 77
S_C = 78
S_NACT = 86
S_W16 = 87
S_COL2 = 88
S_FAST = 89
S_LAST = 90
S_FB = 91
S_T2 = 92


def srd(dst, lo, nbytes):
    e(f"s_mov_b32 s{dst}, s{lo}")
    e(f"s_and_b32 s{dst+1}, s{lo+1}, 0xffff")
    e(f"s_mov_b32 s{dst+2}, {nbytes}")
    e(f"s_mov_b32 s{dst+3}, 0x00020000")


uid = [0]


def lab(p):
    uid[0] += 1
    return f"L_{p}_{uid[0]}"


def issue_k(slot):
    none, go = lab("none"), lab("go")
    e(f"s_cmp_eq_u32 s{S_MASK}, 0")
    e(f"s_cbranch_scc1 {none}")
    e(f"s_ff1_i32_b32 s{S_T}, s{S_MASK}")
    e(f"s_bitset0_b32 s{S_MASK}, s{S_T}")
    e(f"v_readlane_b32 s{S_T+1}, v{V_PHYS}, s{S_T}")
    e(f"s_lshl_b32 s{S_J16[slot]}, s{S_T}, 6")
    e(f"s_add_u32 s{S_J16[slot]}, s{S_J16[slot]}, s{S_W16}")
    e(f"s_nop 1")
    e(f"s_lshl_b32 s{S_T+1}, s{S_T+1}, 16")
    e(f"s_add_u32 s{S_SOFF[slot]}, s{S_T+1}, s{S_KVH512}")
    e(f"s_branch {go}")
    e(f"{none}:")
    e(f"s_mov_b32 s{S_SOFF[slot]}, {KV_BYTES}")
    e(f"{go}:")
    for s in range(8):
        r = V_K[slot] + 4 * s
        e(f"buffer_load_dwordx4 v[{r}:{r+3}], v{V_OFFK}, s[{S_K}:{S_K+3}], s{S_SOFF[slot]} offen offset:{s*64}")


def issue_v(slot):
    e(f"s_add_u32 s{S_VO+1}, s{S_SOFF[slot]}, 0x1000")
    e(f"s_add_u32 s{S_VO+2}, s{S_SOFF[slot]}, 0x2000")
    e(f"s_add_u32 s{S_VO+3}, s{S_SOFF[slot]}, 0x3000")
    for i in range(4):
        so = S_SOFF[slot] if i == 0 else S_VO + i
        for half in range(2):
            r = V_V[slot] + (i * 2 + half) * 4
            e(f"buffer_load_dwordx4 v[{r}:{r+3}], v{V_OFFV}, s[{S_V}:{S_V+3}], s{so} offen offset:{half*256}")


def tile(slot):
    K, V = V_K[slot], V_V[slot]
    e("s_waitcnt vmcnt(24)")
    for s in range(8):
        c = "0" if s == 0 else f"v[{V_S}:{V_S+3}]"
        e(f"v_mfma_f32_16x16x32_bf16 v[{V_S}:{V_S+3}], v[{K+4*s}:{K+4*s+3}], v[{V_Q+4*s}:{V_Q+4*s+3}], {c}")
    e(f"v_subrev_u32 v{V_T0}, s{S_J16[slot]}, v{V_CTX}")
    issue_k(slot)
    e(f"v_mov_b32 v{V_T1}, {NEG_MASK:#x}")
    e(f"v_cmp_lt_i32 vcc, 0, v{V_T0}")
    e(f"v_mul_f32 v{V_S}, v{V_SC}, v{V_S}")
    e(f"v_mul_f32 v{V_S+1}, v{V_SC}, v{V_S+1}")
    e(f"v_cndmask_b32 v{V_S}, v{V_T1}, v{V_S}, vcc")
    e(f"v_cmp_lt_i32 vcc, 1, v{V_T0}")
    e(f"v_mul_f32 v{V_S+2}, v{V_SC}, v{V_S+2}")
    e(f"v_mul_f32 v{V_S+3}, v{V_SC}, v{V_S+3}")
    e(f"v_cndmask_b32 v{V_S+1}, v{V_T1}, v{V_S+1}, vcc")
    e(f"v_cmp_lt_i32 vcc, 2, v{V_T0}")
    e("s_nop 1")
    e(f"v_cndmask_b32 v{V_S+2}, v{V_T1}, v{V_S+2}, vcc")
    e(f"v_cmp_lt_i32 vcc, 3, v{V_T0}")
    e("s_nop 1")
    e(f"v_cndmask_b32 v{V_S+3}, v{V_T1}, v{V_S+3}, vcc")
    e(f"v_max3_f32 v{V_T0}, v{V_S}, v{V_S+1}, v{V_S+2}")
    e(f"v_max_f32 v{V_T0}, v{V_T0}, v{V_S+3}")
    e(f"v_mov_b32 v{V_T1}, v{V_T0}")
    e("s_nop 1")
    e(f"v_permlane16_swap_b32 v{V_T0}, v{V_T1}")
    e(f"v_max_f32 v{V_T0}, v{V_T0}, v{V_T1}")
    e(f"v_mov_b32 v{V_T1}, v{V_T0}")
    e("s_nop 1")
    e(f"v_permlane32_swap_b32 v{V_T0}, v{V_T1}")
    e(f"v_max3_f32 v{V_T0}, v{V_T0}, v{V_T1}, v{V_M}")
    e(f"v_sub_f32 v{V_T1}, v{V_M}, v{V_T0}")
    e(f"v_exp_f32 v{V_T1}, v{V_T1}")
    e(f"v_mov_b32 v{V_M}, v{V_T0}")
    for r in range(4):
        e(f"v_sub_f32 v{V_S+r}, v{V_S+r}, v{V_T0}")
    for r in range(4):
        e(f"v_exp_f32 v{V_S+r}, v{V_S+r}")
    e(f"v_cmp_neq_f32 vcc, 1.0, v{V_T1}")
    e(f"v_add_f32 v{V_T0}, v{V_S}, v{V_S+1}")
    e(f"v_add_f32 v{V_T0}, v{V_T0}, v{V_S+2}")
    e(f"v_add_f32 v{V_T0}, v{V_T0}, v{V_S+3}")
    e(f"v_fma_f32 v{V_L}, v{V_L}, v{V_T1}, v{V_T0}")
    e(f"v_cvt_pk_bf16_f32 v{V_P}, v{V_S}, v{V_S+1}")
    e(f"v_cvt_pk_bf16_f32 v{V_P+1}, v{V_S+2}, v{V_S+3}")
    skip = lab("nors")
    e(f"s_cbranch_vccz {skip}")
    for r in range(64):
        e(f"v_mul_f32 v{V_ACC+r}, v{V_T1}, v{V_ACC+r}")
    e(f"{skip}:")
    e("s_waitcnt vmcnt(24)")
    n = 0
    pend = []
    for half in range(2):
        for d in range(4):
            t = V_VT + (n % 4) * 4
            n += 1
            T = [V + (i * 2 + half) * 4 + d for i in range(4)]
            e(f"v_perm_b32 v{t}, v{T[1]}, v{T[0]}, s{S_SELLO}")
            e(f"v_perm_b32 v{t+1}, v{T[3]}, v{T[2]}, s{S_SELLO}")
            e(f"v_perm_b32 v{t+2}, v{T[1]}, v{T[0]}, s{S_SELHI}")
            e(f"v_perm_b32 v{t+3}, v{T[3]}, v{T[2]}, s{S_SELHI}")
            for m in pend:
                e(m)
            a0 = V_ACC + (half * 8 + 2 * d) * 4
            a1 = a0 + 4
            pend = [
                f"v_mfma_f32_16x16x16_bf16 v[{a0}:{a0+3}], v[{t}:{t+1}], v[{V_P}:{V_P+1}], v[{a0}:{a0+3}]",
                f"v_mfma_f32_16x16x16_bf16 v[{a1}:{a1+3}], v[{t+2}:{t+3}], v[{V_P}:{V_P+1}], v[{a1}:{a1+3}]",
            ]
    issue_v(slot)
    for m in pend:
        e(m)


def issue_partial_loads():
    e(f"s_and_b32 s{S_T2}, s{S_FB}, 7")
    e(f"s_lshl_b32 s{S_T2}, s{S_T2}, 1")
    e(f"s_add_u32 s{S_T2}, s{S_T2}, s{S_COL2}")
    e(f"s_lshl_b32 s{S_T2+1}, s{S_KVH}, 2")
    e(f"s_add_u32 s{S_T2+1}, s{S_T2+1}, s{S_GRP}")
    e(f"s_lshl_b32 s{S_T2+1}, s{S_T2+1}, 17")
    e(f"s_lshl_b32 s{S_T2+2}, s{S_T2}, 10")
    e(f"s_add_u32 s{S_T2+2}, s{S_T2+2}, s{S_T2+1}")
    e(f"s_lshl_b32 s{S_T2+3}, s{S_T2}, 2")
    e(f"s_add_u32 s{S_T2+3}, s{S_T2+3}, s{S_T2+1}")
    e(f"s_add_u32 s{S_T2+3}, s{S_T2+3}, 0x4000")
    for c in range(4):
        r = 32 + 4 * c
        ina, nxt = lab("ina"), lab("nxt")
        e(f"s_bitcmp1_b32 s{S_ACT}, {c}")
        e(f"s_cbranch_scc0 {ina}")
        e(f"buffer_load_dword v{r}, v24, s[{S_WS}:{S_WS+3}], s{S_T2+2} offen sc1")
        e(f"buffer_load_dword v{r+1}, v24, s[{S_WS}:{S_WS+3}], s{S_T2+2} offen offset:64 sc1")
        e(f"buffer_load_dword v{r+2}, v25, s[{S_WS}:{S_WS+3}], s{S_T2+3} offen sc1")
        e(f"buffer_load_dword v{r+3}, v25, s[{S_WS}:{S_WS+3}], s{S_T2+3} offen offset:64 sc1")
        e(f"s_branch {nxt}")
        e(f"{ina}:")
        e(f"v_mov_b32 v{r}, 0")
        e(f"v_mov_b32 v{r+1}, 0")
        e(f"v_mov_b32 v{r+2}, {M_INIT:#x}")
        e(f"v_mov_b32 v{r+3}, 0")
        e(f"{nxt}:")
        if c < 3:
            e(f"s_add_u32 s{S_T2+2}, s{S_T2+2}, {SLOT}")
            e(f"s_add_u32 s{S_T2+3}, s{S_T2+3}, {SLOT}")


def final_combine():
    e("s_waitcnt vmcnt(0)")
    e("v_max3_f32 v27, v22, v34, v38")
    e("v_max3_f32 v27, v27, v42, v46")
    e("v_sub_f32 v22, v22, v27")
    for c in range(4):
        e(f"v_sub_f32 v{34+4*c}, v{34+4*c}, v27")
    e("v_exp_f32 v22, v22")
    for c in range(4):
        e(f"v_exp_f32 v{34+4*c}, v{34+4*c}")
    e("s_nop 0")
    e("v_mul_f32 v20, v20, v22")
    e("v_mul_f32 v21, v21, v22")
    e("v_mul_f32 v23, v23, v22")
    for c in range(4):
        e(f"v_fma_f32 v20, v{32+4*c}, v{34+4*c}, v20")
        e(f"v_fma_f32 v21, v{33+4*c}, v{34+4*c}, v21")
        e(f"v_fma_f32 v23, v{35+4*c}, v{34+4*c}, v23")
    e("v_rcp_f32 v23, v23")
    e("s_nop 0")
    e("v_mul_f32 v20, v20, v23")
    e("v_mul_f32 v21, v21, v23")
    e("v_cvt_pk_bf16_f32 v20, v20, v21")
    e(f"s_lshl_b32 s{S_T2}, s{S_FB}, 4")
    e(f"s_lshl_b32 s{S_T2+1}, s{S_KVH}, 1")
    e(f"s_add_u32 s{S_T2}, s{S_T2}, s{S_T2+1}")
    e(f"s_add_u32 s{S_T2}, s{S_T2}, s{S_COL2}")
    e(f"s_lshl_b32 s{S_T2}, s{S_T2}, 9")
    e(f"buffer_store_dword v20, v26, s[{S_OUT}:{S_OUT+3}], s{S_T2} offen")


def gen():
    hdr = open(OUT + ".ref").read().split("; Override launch geometry")[0]
    L.append(hdr.rstrip())
    L.append("; Override launch geometry by editing the next line (default: block=256,")
    L.append(f"; @launch grid=({NA+NB},1,1) block=(256,1,1) lds={LDS_BYTES}")
    L.append('.amdgcn_target "amdgcn-amd-amdhsa--gfx950"')
    L.append(".text")
    L.append(f".globl {NAME}")
    L.append(".p2align 8")
    L.append(f".type {NAME},@function")
    L.append(f"{NAME}:")
    e(f"s_cmp_ge_u32 s2, {NA+NB}")
    e("s_cbranch_scc1 L_end")
    e("s_load_dwordx16 s[4:19], s[0:1], 0")
    e("v_lshrrev_b32 v1, 6, v0")
    e("v_and_b32 v0, 63, v0")
    e(f"v_readfirstlane_b32 s{S_W}, v1")
    e(f"s_and_b32 s{S_KVH}, s2, 7")
    e(f"s_lshr_b32 s{S_T}, s2, 3")
    e(f"s_lshl_b32 s{S_KVH512}, s{S_KVH}, 9")
    e(f"s_mov_b32 s{S_SELLO}, 0x05040100")
    e(f"s_mov_b32 s{S_SELHI}, 0x07060302")
    e(f"s_cmp_lt_u32 s2, {NA}")
    e("s_cbranch_scc1 L_isA")
    e(f"s_sub_u32 s{S_B}, s{S_T}, {NA//8}")
    e(f"s_lshr_b32 s{S_GRP}, s{S_B}, 3")
    e(f"s_mov_b32 s{S_CHUNK}, 0")
    e(f"s_mov_b32 s{S_ISA}, 0")
    e("s_branch L_dec")
    e("L_isA:")
    e(f"s_lshr_b32 s{S_GRP}, s{S_T}, 2")
    e(f"s_and_b32 s{S_CHUNK}, s{S_T}, 3")
    e(f"s_lshl_b32 s{S_B}, s{S_GRP}, 3")
    e(f"s_mov_b32 s{S_ISA}, 1")
    e("L_dec:")
    e(f"s_lshl_b32 s{S_W16}, s{S_W}, 4")
    e(f"s_lshr_b32 s{S_COL2}, s{S_W}, 1")
    e("v_and_b32 v8, 15, v0")
    e("v_lshrrev_b32 v9, 4, v0")
    e(f"v_lshlrev_b32 v{V_OFFK}, 12, v8")
    e(f"v_lshl_add_u32 v{V_OFFK}, v9, 4, v{V_OFFK}")
    e(f"v_lshlrev_b32 v{V_OFFV}, 14, v9")
    e(f"v_lshl_add_u32 v{V_OFFV}, v8, 4, v{V_OFFV}")
    e("v_lshrrev_b32 v10, 1, v8")
    e(f"v_mul_u32_u24 v10, s{S_ISA}, v10")
    e(f"v_add_u32 v10, s{S_B}, v10")
    e("v_and_b32 v11, 1, v8")
    e("v_lshl_add_u32 v11, v10, 4, v11")
    e("v_lshlrev_b32 v11, 9, v11")
    e("v_lshl_add_u32 v11, v9, 4, v11")
    e("v_lshlrev_b32 v12, 2, v10")
    e("v_and_b32 v13, 31, v0")
    e("v_lshrrev_b32 v14, 5, v0")
    e("v_lshlrev_b32 v13, 4, v13")
    e("v_lshl_add_u32 v14, v14, 9, v13")
    e(f"s_lshl_b32 s{S_T}, s{S_GRP}, 12")
    e(f"s_lshl_b32 s{S_T+1}, s{S_KVH}, 10")
    e(f"s_lshl_b32 s{S_VO}, s{S_B}, 9")
    e(f"s_lshl_b32 s{S_VO+1}, s{S_W}, 2")
    e(f"s_add_u32 s{S_VO}, s{S_VO}, s{S_VO+1}")
    e("s_waitcnt lgkmcnt(0)")
    srd(S_BT, 10, 16384)
    srd(S_CTX, 12, 128)
    srd(S_Q, 4, 262144)
    e(f"buffer_load_dwordx4 v[144:147], v13, s[{S_BT}:{S_BT+3}], s{S_T} offen")
    for i in range(4):
        e(f"buffer_load_dwordx4 v[{128+4*i}:{131+4*i}], v14, s[{S_BT}:{S_BT+3}], s{S_T} offen offset:{i*1024}")
    e(f"buffer_load_dword v{V_PHYS}, v13, s[{S_BT}:{S_BT+3}], s{S_VO} offen")
    e(f"buffer_load_dword v{V_CTX}, v12, s[{S_CTX}:{S_CTX+3}], 0 offen")
    for s in range(8):
        e(f"buffer_load_dwordx4 v[{V_Q+4*s}:{V_Q+4*s+3}], v11, s[{S_Q}:{S_Q+3}], s{S_T+1} offen offset:{s*64}")
    srd(S_K, 6, KV_BYTES)
    srd(S_V, 8, KV_BYTES)
    srd(S_OUT, 14, 262144)
    srd(S_DBG, 16, 256)
    srd(S_WS, 18, WS_BYTES)
    for r in range(64):
        e(f"v_mov_b32 v{V_ACC+r}, 0")
    e(f"v_mov_b32 v{V_M}, {M_INIT:#x}")
    e(f"v_mov_b32 v{V_L}, 0")
    e("s_waitcnt vmcnt(8)")
    for c in range(4):
        for i in range(4):
            e(f"v_cmp_eq_u32 s[{S_C+2*i}:{S_C+2*i+1}], v{128+4*i+c}, v{144+c}")
        e(f"s_and_b64 s[{S_C}:{S_C+1}], s[{S_C}:{S_C+1}], s[{S_C+2}:{S_C+3}]")
        e(f"s_and_b64 s[{S_C+4}:{S_C+5}], s[{S_C+4}:{S_C+5}], s[{S_C+6}:{S_C+7}]")
        e(f"s_and_b64 s[{S_C}:{S_C+1}], s[{S_C}:{S_C+1}], s[{S_C+4}:{S_C+5}]")
        e(f"s_and_b32 s{S_M+c}, s{S_C}, s{S_C+1}")
    e(f"v_cmp_lt_i32 vcc, 0, v{V_CTX}")
    e(f"v_min_i32 v12, 0x800, v{V_CTX}")
    e("v_mov_b32 v13, 0x800")
    e("v_cndmask_b32 v12, v13, v12, vcc")
    e(f"v_mov_b32 v13, {SCALE:#x}")
    e(f"v_cndmask_b32 v{V_SC}, 0, v13, vcc")
    e("v_lshlrev_b32 v9, 2, v9")
    e(f"v_sub_u32 v{V_CTX}, v12, v9")
    e(f"v_readfirstlane_b32 s{S_T2}, v12")
    e(f"s_mov_b32 s{S_MASK}, s{S_M}")
    for c in range(1, 4):
        e(f"s_cmp_eq_u32 s{S_W}, {c}")
        e(f"s_cselect_b32 s{S_MASK}, s{S_M+c}, s{S_MASK}")
    e(f"s_or_b32 s{S_T}, s{S_M}, s{S_M+1}")
    e(f"s_or_b32 s{S_T}, s{S_T}, s{S_M+2}")
    e(f"s_or_b32 s{S_T}, s{S_T}, s{S_M+3}")
    e(f"s_mov_b32 s{S_ACT}, 0")
    for c in range(4):
        e(f"s_and_b32 s{S_T+1}, s{S_T}, {0xff << (8*c):#x}")
        e(f"s_cselect_b32 s{S_T+1}, {1 << c}, 0")
        e(f"s_or_b32 s{S_ACT}, s{S_ACT}, s{S_T+1}")
    e(f"s_bcnt1_i32_b32 s{S_NACT}, s{S_ACT}")
    e(f"s_cmp_eq_u32 s{S_ISA}, 0")
    e("s_cbranch_scc1 L_maskB")
    e(f"s_lshr_b32 s{S_T}, s{S_ACT}, s{S_CHUNK}")
    e(f"s_and_b32 s{S_T}, s{S_T}, 1")
    e("s_cbranch_scc0 L_end")
    e(f"s_lshl_b32 s{S_T}, s{S_CHUNK}, 3")
    e(f"s_lshl_b32 s{S_T}, 0xff, s{S_T}")
    e(f"s_and_b32 s{S_MASK}, s{S_MASK}, s{S_T}")
    e("s_branch L_maskdone")
    e("L_maskB:")
    e(f"s_add_u32 s{S_T2}, s{S_T2}, 15")
    e(f"s_lshr_b32 s{S_T2}, s{S_T2}, 4")
    e(f"s_sub_u32 s{S_T2}, s{S_T2}, s{S_W}")
    e(f"s_add_u32 s{S_T2}, s{S_T2}, 3")
    e(f"s_lshr_b32 s{S_T2}, s{S_T2}, 2")
    e(f"s_bfm_b64 s[{S_T}:{S_T+1}], s{S_T2}, 0")
    e(f"s_andn2_b32 s{S_MASK}, s{S_T}, s{S_MASK}")
    e("L_maskdone:")
    e(f"s_bcnt1_i32_b32 s{S_N}, s{S_MASK}")
    e(f"s_cmp_eq_u32 s{S_N}, 0")
    e("s_cbranch_scc1 L_loop_done")
    issue_k(0)
    issue_v(0)
    issue_k(1)
    issue_v(1)
    e("L_loop:")
    tile(0)
    e(f"s_sub_u32 s{S_N}, s{S_N}, 1")
    e(f"s_cmp_eq_u32 s{S_N}, 0")
    e("s_cbranch_scc1 L_loop_done")
    tile(1)
    e(f"s_sub_u32 s{S_N}, s{S_N}, 1")
    e(f"s_cmp_lg_u32 s{S_N}, 0")
    e("s_cbranch_scc1 L_loop")
    e("L_loop_done:")
    e("s_waitcnt vmcnt(0)")
    e(f"s_mov_b32 s{S_FB}, s{S_B}")
    e(f"s_mov_b32 s{S_FAST}, 1")
    e("v_mov_b32 v25, 0")
    e(f"s_lshl_b32 s{S_T2}, s{S_B}, 3")
    e(f"s_add_u32 s{S_T2}, s{S_T2}, s{S_KVH}")
    e(f"s_and_b32 s{S_T2+1}, s{S_T2}, 0xfc")
    e(f"s_and_b32 s{S_T2+2}, s{S_T2}, 3")
    e(f"s_lshl_b32 s{S_T2+2}, s{S_T2+2}, 3")
    e(f"s_cmp_eq_u32 s{S_ISA}, 1")
    e("s_cbranch_scc1 L_nopoll")
    e(f"s_cmp_eq_u32 s{S_NACT}, 0")
    e("s_cbranch_scc1 L_nopoll")
    e(f"buffer_load_dword v28, v25, s[{S_DBG}:{S_DBG+3}], s{S_T2+1} offen sc1")
    e("s_waitcnt vmcnt(0)")
    e(f"v_readfirstlane_b32 s{S_T}, v28")
    e("s_nop 1")
    e(f"s_lshr_b32 s{S_T}, s{S_T}, s{S_T2+2}")
    e(f"s_and_b32 s{S_T}, s{S_T}, 0xff")
    e(f"s_cmp_eq_u32 s{S_T}, s{S_NACT}")
    e(f"s_cselect_b32 s{S_FAST}, 1, 0")
    e("L_nopoll:")
    e(f"v_mov_b32 v{V_T1}, v{V_L}")
    e("s_nop 1")
    e(f"v_permlane16_swap_b32 v{V_L}, v{V_T1}")
    e(f"v_add_f32 v{V_L}, v{V_L}, v{V_T1}")
    e(f"v_mov_b32 v{V_T1}, v{V_L}")
    e("s_nop 1")
    e(f"v_permlane32_swap_b32 v{V_L}, v{V_T1}")
    e(f"v_add_f32 v{V_L}, v{V_L}, v{V_T1}")
    e("v_and_b32 v8, 15, v0")
    e("v_lshrrev_b32 v9, 4, v0")
    e("v_lshlrev_b32 v10, 2, v8")
    e(f"s_lshl_b32 s{S_T}, s{S_W}, 7")
    e(f"v_add_u32 v11, s{S_T}, v10")
    e(f"ds_write_b32 v11, v{V_M} offset:{LDS_ML}")
    e(f"ds_write_b32 v11, v{V_L} offset:{LDS_ML+64}")
    e(f"v_mov_b32 v12, s{S_FAST}")
    e(f"s_lshl_b32 s{S_T}, s{S_W}, 2")
    e(f"v_mov_b32 v13, s{S_T}")
    e(f"ds_write_b32 v13, v12 offset:{LDS_FLAG}")
    e("s_waitcnt lgkmcnt(0)")
    e("s_barrier")
    for w in range(4):
        e(f"ds_read_b32 v{16+w}, v10 offset:{LDS_ML+128*w}")
        e(f"ds_read_b32 v{20+w}, v10 offset:{LDS_ML+128*w+64}")
    e(f"ds_read_b128 v[28:31], v25 offset:{LDS_FLAG}")
    e("v_and_b32 v24, 15, v0")
    e("v_lshrrev_b32 v26, 4, v0")
    e(f"s_and_b32 s{S_T}, s{S_W}, 1")
    e(f"s_lshl_b32 s{S_T+1}, s{S_T}, 9")
    e("v_lshlrev_b32 v27, 7, v26")
    e("v_lshl_add_u32 v24, v24, 2, v27")
    e(f"v_add_u32 v24, s{S_T+1}, v24")
    e("v_and_b32 v27, 3, v0")
    e("v_lshlrev_b32 v27, 4, v27")
    e("v_lshl_add_u32 v27, v26, 2, v27")
    e("v_bfe_u32 v26, v0, 2, 2")
    e("v_lshl_add_u32 v26, v26, 6, v27")
    e(f"s_lshl_b32 s{S_T+1}, s{S_T}, 8")
    e(f"v_add_u32 v26, s{S_T+1}, v26")
    e("s_waitcnt lgkmcnt(0)")
    e("v_and_b32 v28, v28, v29")
    e("v_and_b32 v30, v30, v31")
    e("v_and_b32 v28, v28, v30")
    e("s_nop 0")
    e(f"v_readfirstlane_b32 s{S_FAST}, v28")
    e("v_max3_f32 v12, v16, v17, v18")
    e("v_max_f32 v12, v12, v19")
    for w in range(4):
        e(f"v_sub_f32 v{16+w}, v{16+w}, v12")
    e(f"v_sub_f32 v13, v{V_M}, v12")
    for w in range(4):
        e(f"v_exp_f32 v{16+w}, v{16+w}")
    e("v_exp_f32 v13, v13")
    e("v_mul_f32 v14, v16, v20")
    e("v_fma_f32 v14, v17, v21, v14")
    e("v_fma_f32 v14, v18, v22, v14")
    e("v_fma_f32 v14, v19, v23, v14")
    e(f"s_cmp_eq_u32 s{S_ISA}, 1")
    e("s_cbranch_scc1 L_noearly")
    e(f"s_cmp_eq_u32 s{S_FAST}, 0")
    e("s_cbranch_scc1 L_noearly")
    issue_partial_loads()
    e("L_noearly:")
    for r in range(64):
        e(f"v_mul_f32 v{V_ACC+r}, v13, v{V_ACC+r}")
    e(f"s_lshl_b32 s{S_T}, s{S_W}, 14")
    e("v_lshlrev_b32 v11, 10, v8")
    e("v_lshl_add_u32 v11, v9, 4, v11")
    e(f"v_add_u32 v11, s{S_T}, v11")
    for a in range(16):
        e(f"ds_write_b128 v11, v[{V_ACC+4*a}:{V_ACC+4*a+3}] offset:{LDS_O+a*64}")
    e(f"ds_write_b32 v10, v12 offset:{LDS_FML}")
    e(f"ds_write_b32 v10, v14 offset:{LDS_FML+64}")
    e("s_waitcnt lgkmcnt(0)")
    e("s_barrier")
    e(f"s_cmp_eq_u32 s{S_ISA}, 1")
    e("s_cbranch_scc1 L_A_publish")
    e(f"s_lshl_b32 s{S_T}, s{S_COL2}, 10")
    e(f"v_add_u32 v11, s{S_T}, v24")
    e(f"s_lshl_b32 s{S_T}, s{S_COL2}, 2")
    e(f"v_mov_b32 v10, s{S_T}")
    for w in range(4):
        e(f"v_add_u32 v{56+w}, {LDS_O+16384*w}, v11")
    for w in range(4):
        e(f"ds_read2_b32 v[{48+2*w}:{49+2*w}], v{56+w} offset0:0 offset1:16")
    e(f"ds_read_b32 v22, v10 offset:{LDS_FML}")
    e(f"ds_read_b32 v23, v10 offset:{LDS_FML+64}")
    e("s_waitcnt lgkmcnt(0)")
    e("v_add_f32 v20, v48, v50")
    e("v_add_f32 v21, v49, v51")
    e("v_add_f32 v20, v20, v52")
    e("v_add_f32 v21, v21, v53")
    e("v_add_f32 v20, v20, v54")
    e("v_add_f32 v21, v21, v55")
    e(f"s_cmp_eq_u32 s{S_FAST}, 1")
    e("s_cbranch_scc1 L_B_final")
    e(f"s_lshl_b32 s{S_T}, s{S_B}, 3")
    e(f"s_add_u32 s{S_T}, s{S_T}, s{S_KVH}")
    e(f"s_lshl_b32 s{S_T}, s{S_T}, 12")
    e(f"s_add_u32 s{S_T}, s{S_T}, {BSLOT_BASE}")
    e(f"buffer_store_dword v20, v11, s[{S_WS}:{S_WS+3}], s{S_T} offen sc1")
    e(f"buffer_store_dword v21, v11, s[{S_WS}:{S_WS+3}], s{S_T} offen offset:64 sc1")
    e(f"buffer_store_dword v22, v10, s[{S_WS}:{S_WS+3}], s{S_T} offen offset:2048 sc1")
    e(f"buffer_store_dword v23, v10, s[{S_WS}:{S_WS+3}], s{S_T} offen offset:2112 sc1")
    e("s_waitcnt vmcnt(0)")
    e("s_barrier")
    e(f"s_cmp_lg_u32 s{S_W}, 0")
    e("s_cbranch_scc1 L_B_noatom")
    e(f"s_lshl_b32 s{S_T2}, s{S_B}, 3")
    e(f"s_add_u32 s{S_T2}, s{S_T2}, s{S_KVH}")
    e(f"s_and_b32 s{S_T2+1}, s{S_T2}, 0xfc")
    e(f"s_and_b32 s{S_T2+2}, s{S_T2}, 3")
    e(f"s_lshl_b32 s{S_T2+2}, s{S_T2+2}, 3")
    e(f"s_lshl_b32 s{S_T}, 1, s{S_T2+2}")
    e(f"v_mov_b32 v28, s{S_T}")
    e("v_cmp_eq_u32 vcc, 0, v0")
    e(f"s_and_saveexec_b64 s[{S_C}:{S_C+1}], vcc")
    e(f"buffer_atomic_add v28, v25, s[{S_DBG}:{S_DBG+3}], s{S_T2+1} offen sc0 sc1")
    e("s_waitcnt vmcnt(0)")
    e(f"v_lshrrev_b32 v28, s{S_T2+2}, v28")
    e("v_and_b32 v28, 0xff, v28")
    e(f"ds_write_b32 v25, v28 offset:{LDS_VERD}")
    e(f"s_mov_b64 exec, s[{S_C}:{S_C+1}]")
    e("L_B_noatom:")
    e("s_waitcnt lgkmcnt(0)")
    e("s_barrier")
    e(f"ds_read_b32 v28, v25 offset:{LDS_VERD}")
    e("s_waitcnt lgkmcnt(0)")
    e(f"v_readfirstlane_b32 s{S_T}, v28")
    e("s_nop 1")
    e(f"s_cmp_lg_u32 s{S_T}, s{S_NACT}")
    e("s_cbranch_scc1 L_end")
    issue_partial_loads()
    e("L_B_final:")
    final_combine()
    e("s_branch L_end")
    e("L_A_publish:")
    e(f"s_lshl_b32 s{S_T}, s{S_W}, 10")
    e("v_lshlrev_b32 v11, 4, v0")
    e(f"v_add_u32 v11, s{S_T}, v11")
    e(f"s_lshl_b32 s{S_T}, s{S_KVH}, 2")
    e(f"s_add_u32 s{S_T}, s{S_T}, s{S_GRP}")
    e(f"s_lshl_b32 s{S_T}, s{S_T}, 2")
    e(f"s_add_u32 s{S_T}, s{S_T}, s{S_CHUNK}")
    e(f"s_lshl_b32 s{S_T}, s{S_T}, 15")
    for q in range(4):
        for w in range(4):
            e(f"ds_read_b128 v[{32+4*w}:{35+4*w}], v11 offset:{LDS_O+w*16384+q*4096}")
        e("s_waitcnt lgkmcnt(0)")
        for k in range(4):
            e(f"v_add_f32 v{32+k}, v{32+k}, v{36+k}")
            e(f"v_add_f32 v{40+k}, v{40+k}, v{44+k}")
        for k in range(4):
            e(f"v_add_f32 v{48+4*q+k}, v{32+k}, v{40+k}")
        e(f"s_add_u32 s{S_T+1}, s{S_T}, {q*4096}")
        e(f"buffer_store_dwordx4 v[{48+4*q}:{51+4*q}], v11, s[{S_WS}:{S_WS+3}], s{S_T+1} offen sc1")
    e(f"s_cmp_lg_u32 s{S_W}, 0")
    e("s_cbranch_scc1 L_A_noml")
    e("v_lshlrev_b32 v10, 2, v0")
    e("v_cmp_gt_u32 vcc, 32, v0")
    e(f"s_and_saveexec_b64 s[{S_C}:{S_C+1}], vcc")
    e(f"ds_read_b32 v28, v10 offset:{LDS_FML}")
    e("s_waitcnt lgkmcnt(0)")
    e(f"s_add_u32 s{S_T+1}, s{S_T}, 0x4000")
    e(f"buffer_store_dword v28, v10, s[{S_WS}:{S_WS+3}], s{S_T+1} offen sc1")
    e(f"s_mov_b64 exec, s[{S_C}:{S_C+1}]")
    e("L_A_noml:")
    e("s_waitcnt vmcnt(0)")
    e("s_barrier")
    e(f"s_cmp_lg_u32 s{S_W}, 0")
    e("s_cbranch_scc1 L_A_noatom")
    e(f"s_and_b32 s{S_T2}, s{S_KVH}, 3")
    e(f"s_lshl_b32 s{S_T2}, s{S_T2}, 3")
    e(f"s_lshl_b32 s{S_T}, 1, s{S_T2}")
    e(f"v_mov_b32 v28, s{S_T}")
    e(f"s_and_b32 s{S_T}, s{S_KVH}, 4")
    e(f"s_lshl_b32 s{S_T+1}, s{S_B}, 3")
    e(f"s_add_u32 s{S_T}, s{S_T}, s{S_T+1}")
    e("v_lshlrev_b32 v10, 3, v0")
    e("v_cmp_gt_u32 vcc, 8, v0")
    e(f"s_and_saveexec_b64 s[{S_C}:{S_C+1}], vcc")
    e(f"buffer_atomic_add v28, v10, s[{S_DBG}:{S_DBG+3}], s{S_T} offen sc0 sc1")
    e("s_waitcnt vmcnt(0)")
    e(f"v_lshrrev_b32 v28, s{S_T2}, v28")
    e("v_and_b32 v28, 0xff, v28")
    e(f"v_cmp_eq_u32 vcc, s{S_NACT}, v28")
    e(f"s_mov_b64 exec, s[{S_C}:{S_C+1}]")
    e("s_and_b32 vcc_lo, vcc_lo, 0xff")
    e("v_mov_b32 v28, vcc_lo")
    e(f"ds_write_b32 v25, v28 offset:{LDS_VERD}")
    e("L_A_noatom:")
    e("s_waitcnt lgkmcnt(0)")
    e("s_barrier")
    e(f"ds_read_b32 v28, v25 offset:{LDS_VERD}")
    e("s_waitcnt lgkmcnt(0)")
    e(f"v_readfirstlane_b32 s{S_LAST}, v28")
    e("s_nop 1")
    e("L_A_lastloop:")
    e(f"s_cmp_eq_u32 s{S_LAST}, 0")
    e("s_cbranch_scc1 L_end")
    e(f"s_ff1_i32_b32 s{S_T}, s{S_LAST}")
    e(f"s_bitset0_b32 s{S_LAST}, s{S_T}")
    e(f"s_add_u32 s{S_FB}, s{S_B}, s{S_T}")
    e(f"s_lshl_b32 s{S_T}, s{S_FB}, 3")
    e(f"s_add_u32 s{S_T}, s{S_T}, s{S_KVH}")
    e(f"s_lshl_b32 s{S_T}, s{S_T}, 12")
    e(f"s_add_u32 s{S_T}, s{S_T}, {BSLOT_BASE}")
    e(f"s_lshl_b32 s{S_T+1}, s{S_COL2}, 10")
    e(f"v_add_u32 v11, s{S_T+1}, v24")
    e(f"s_lshl_b32 s{S_T+1}, s{S_COL2}, 2")
    e(f"v_mov_b32 v10, s{S_T+1}")
    e(f"buffer_load_dword v20, v11, s[{S_WS}:{S_WS+3}], s{S_T} offen sc1")
    e(f"buffer_load_dword v21, v11, s[{S_WS}:{S_WS+3}], s{S_T} offen offset:64 sc1")
    e(f"buffer_load_dword v22, v10, s[{S_WS}:{S_WS+3}], s{S_T} offen offset:2048 sc1")
    e(f"buffer_load_dword v23, v10, s[{S_WS}:{S_WS+3}], s{S_T} offen offset:2112 sc1")
    issue_partial_loads()
    final_combine()
    e("s_branch L_A_lastloop")
    e("L_end:")
    e("s_endpgm")
    L.append('.section .rodata,"a"')
    L.append(".p2align 6")
    L.append(f".amdhsa_kernel {NAME}")
    L.append("  .amdhsa_next_free_vgpr 256")
    L.append("  .amdhsa_next_free_sgpr 96")
    L.append("  .amdhsa_accum_offset 256")
    L.append("  .amdhsa_group_segment_fixed_size 0")
    L.append("  .amdhsa_kernarg_size 64")
    L.append("  .amdhsa_user_sgpr_count 2")
    L.append("  .amdhsa_user_sgpr_kernarg_segment_ptr 1")
    L.append("  .amdhsa_system_sgpr_workgroup_id_x 1")
    L.append(".end_amdhsa_kernel")
    open(OUT, "w").write("\n".join(L) + "\n")


gen()
```

```python
import struct
import sys

NAME = "standalone__paged_block_table_kv_radixattention__sampling_kernel"
OUT = "standalone__paged_block_table_kv_radixattention__sampling.s"

KV_BYTES = 2112 * 65536
WS_BYTES = 553648128
NA = 128
NB = 256
LDS_O = 1024
LDS_ML = 0
LDS_FML = 512
LDS_FLAG = 640
LDS_VERD = 672
LDS_BYTES = 65536 + 1024
SLOT = 0x8000
BSLOT_BASE = 0x400000
BSLOT = 0x1000


def f2u(x):
    return struct.unpack("<I", struct.pack("<f", x))[0]


SCALE = f2u(0.0625 * 1.4426950408889634)
NEG_MASK = f2u(-3.0e38)
M_INIT = f2u(-1.0e30)

L = []
import os
STAMP = int(os.environ.get("STAMP", "0"))
def stamp(k):
    if not STAMP:
        return
    e("s_memrealtime s[96:97]")
    e("s_waitcnt lgkmcnt(0)")
    e(f"s_lshl_b32 s98, s2, 2")
    e(f"s_add_u32 s98, s98, s{S_W}")
    e(f"s_lshl_b32 s98, s98, 6")
    e(f"s_add_u32 s98, s98, {0x1000000 + k*8}")
    e("v_mov_b32 v254, s96")
    e("v_mov_b32 v255, s97")
    e("v_mov_b32 v253, 0")
    e(f"buffer_store_dwordx2 v[254:255], v253, s[{S_WS}:{S_WS+3}], s98 offen")


def e(s=""):
    L.append("    " + s if s and not s.endswith(":") else s)


V_LANE = 0
V_OFFK = 1
V_OFFV = 2
V_PHYS = 3
V_CTX = 4
V_M = 5
V_L = 6
V_SC = 7
V_S = 8
V_T0 = 12
V_T1 = 13
V_P = 14
V_VT = 16
V_Q = 32
V_ACC = 64
V_K = [128, 192]
V_V = [160, 224]
S_K, S_V, S_Q, S_BT, S_CTX, S_OUT, S_DBG, S_WS = 20, 24, 28, 32, 36, 40, 44, 48
S_W, S_KVH, S_B, S_GRP, S_CHUNK, S_ISA = 52, 53, 54, 55, 56, 57
S_M = 58
S_MASK, S_N = 62, 63
S_SOFF = [64, 65]
S_J16 = [66, 67]
S_T = 68
S_SELLO, S_SELHI = 70, 71
S_VO = 72
S_KVH512 = 76
S_ACT = 77
S_C = 78
S_NACT = 86
S_W16 = 87
S_COL2 = 88
S_FAST = 89
S_LAST = 90
S_FB = 91
S_T2 = 92


def srd(dst, lo, nbytes):
    e(f"s_mov_b32 s{dst}, s{lo}")
    e(f"s_and_b32 s{dst+1}, s{lo+1}, 0xffff")
    e(f"s_mov_b32 s{dst+2}, {nbytes}")
    e(f"s_mov_b32 s{dst+3}, 0x00020000")


uid = [0]


def lab(p):
    uid[0] += 1
    return f"L_{p}_{uid[0]}"


def issue_k(slot):
    none, go = lab("none"), lab("go")
    e(f"s_cmp_eq_u32 s{S_MASK}, 0")
    e(f"s_cbranch_scc1 {none}")
    e(f"s_ff1_i32_b32 s{S_T}, s{S_MASK}")
    e(f"s_bitset0_b32 s{S_MASK}, s{S_T}")
    e(f"v_readlane_b32 s{S_T+1}, v{V_PHYS}, s{S_T}")
    e(f"s_lshl_b32 s{S_J16[slot]}, s{S_T}, 6")
    e(f"s_add_u32 s{S_J16[slot]}, s{S_J16[slot]}, s{S_W16}")
    e(f"s_nop 1")
    e(f"s_lshl_b32 s{S_T+1}, s{S_T+1}, 16")
    e(f"s_add_u32 s{S_SOFF[slot]}, s{S_T+1}, s{S_KVH512}")
    e(f"s_branch {go}")
    e(f"{none}:")
    e(f"s_mov_b32 s{S_SOFF[slot]}, {KV_BYTES}")
    e(f"{go}:")
    for s in range(8):
        r = V_K[slot] + 4 * s
        e(f"buffer_load_dwordx4 v[{r}:{r+3}], v{V_OFFK}, s[{S_K}:{S_K+3}], s{S_SOFF[slot]} offen offset:{s*64} nt")


def issue_v(slot):
    e(f"s_add_u32 s{S_VO+1}, s{S_SOFF[slot]}, 0x1000")
    e(f"s_add_u32 s{S_VO+2}, s{S_SOFF[slot]}, 0x2000")
    e(f"s_add_u32 s{S_VO+3}, s{S_SOFF[slot]}, 0x3000")
    for i in range(4):
        so = S_SOFF[slot] if i == 0 else S_VO + i
        for half in range(2):
            r = V_V[slot] + (i * 2 + half) * 4
            e(f"buffer_load_dwordx4 v[{r}:{r+3}], v{V_OFFV}, s[{S_V}:{S_V+3}], s{so} offen offset:{half*256} nt")


def tile(slot):
    K, V = V_K[slot], V_V[slot]
    e("s_waitcnt vmcnt(24)")
    for s in range(8):
        c = "0" if s == 0 else f"v[{V_S}:{V_S+3}]"
        e(f"v_mfma_f32_16x16x32_bf16 v[{V_S}:{V_S+3}], v[{K+4*s}:{K+4*s+3}], v[{V_Q+4*s}:{V_Q+4*s+3}], {c}")
    e(f"v_subrev_u32 v{V_T0}, s{S_J16[slot]}, v{V_CTX}")
    issue_k(slot)
    e(f"v_mov_b32 v{V_T1}, {NEG_MASK:#x}")
    e(f"v_cmp_lt_i32 vcc, 0, v{V_T0}")
    e(f"v_mul_f32 v{V_S}, v{V_SC}, v{V_S}")
    e(f"v_mul_f32 v{V_S+1}, v{V_SC}, v{V_S+1}")
    e(f"v_cndmask_b32 v{V_S}, v{V_T1}, v{V_S}, vcc")
    e(f"v_cmp_lt_i32 vcc, 1, v{V_T0}")
    e(f"v_mul_f32 v{V_S+2}, v{V_SC}, v{V_S+2}")
    e(f"v_mul_f32 v{V_S+3}, v{V_SC}, v{V_S+3}")
    e(f"v_cndmask_b32 v{V_S+1}, v{V_T1}, v{V_S+1}, vcc")
    e(f"v_cmp_lt_i32 vcc, 2, v{V_T0}")
    e("s_nop 1")
    e(f"v_cndmask_b32 v{V_S+2}, v{V_T1}, v{V_S+2}, vcc")
    e(f"v_cmp_lt_i32 vcc, 3, v{V_T0}")
    e("s_nop 1")
    e(f"v_cndmask_b32 v{V_S+3}, v{V_T1}, v{V_S+3}, vcc")
    e(f"v_max3_f32 v{V_T0}, v{V_S}, v{V_S+1}, v{V_S+2}")
    e(f"v_max_f32 v{V_T0}, v{V_T0}, v{V_S+3}")
    e(f"v_mov_b32 v{V_T1}, v{V_T0}")
    e("s_nop 1")
    e(f"v_permlane16_swap_b32 v{V_T0}, v{V_T1}")
    e(f"v_max_f32 v{V_T0}, v{V_T0}, v{V_T1}")
    e(f"v_mov_b32 v{V_T1}, v{V_T0}")
    e("s_nop 1")
    e(f"v_permlane32_swap_b32 v{V_T0}, v{V_T1}")
    e(f"v_max3_f32 v{V_T0}, v{V_T0}, v{V_T1}, v{V_M}")
    e(f"v_sub_f32 v{V_T1}, v{V_M}, v{V_T0}")
    e(f"v_exp_f32 v{V_T1}, v{V_T1}")
    e(f"v_mov_b32 v{V_M}, v{V_T0}")
    for r in range(4):
        e(f"v_sub_f32 v{V_S+r}, v{V_S+r}, v{V_T0}")
    for r in range(4):
        e(f"v_exp_f32 v{V_S+r}, v{V_S+r}")
    e(f"v_cmp_neq_f32 vcc, 1.0, v{V_T1}")
    e(f"v_add_f32 v{V_T0}, v{V_S}, v{V_S+1}")
    e(f"v_add_f32 v{V_T0}, v{V_T0}, v{V_S+2}")
    e(f"v_add_f32 v{V_T0}, v{V_T0}, v{V_S+3}")
    e(f"v_fma_f32 v{V_L}, v{V_L}, v{V_T1}, v{V_T0}")
    e(f"v_cvt_pk_bf16_f32 v{V_P}, v{V_S}, v{V_S+1}")
    e(f"v_cvt_pk_bf16_f32 v{V_P+1}, v{V_S+2}, v{V_S+3}")
    skip = lab("nors")
    e(f"s_cbranch_vccz {skip}")
    for r in range(64):
        e(f"v_mul_f32 v{V_ACC+r}, v{V_T1}, v{V_ACC+r}")
    e(f"{skip}:")
    e("s_waitcnt vmcnt(24)")
    n = 0
    pend = []
    for half in range(2):
        for d in range(4):
            t = V_VT + (n % 4) * 4
            n += 1
            T = [V + (i * 2 + half) * 4 + d for i in range(4)]
            e(f"v_perm_b32 v{t}, v{T[1]}, v{T[0]}, s{S_SELLO}")
            e(f"v_perm_b32 v{t+1}, v{T[3]}, v{T[2]}, s{S_SELLO}")
            e(f"v_perm_b32 v{t+2}, v{T[1]}, v{T[0]}, s{S_SELHI}")
            e(f"v_perm_b32 v{t+3}, v{T[3]}, v{T[2]}, s{S_SELHI}")
            for m in pend:
                e(m)
            a0 = V_ACC + (half * 8 + 2 * d) * 4
            a1 = a0 + 4
            pend = [
                f"v_mfma_f32_16x16x16_bf16 v[{a0}:{a0+3}], v[{t}:{t+1}], v[{V_P}:{V_P+1}], v[{a0}:{a0+3}]",
                f"v_mfma_f32_16x16x16_bf16 v[{a1}:{a1+3}], v[{t+2}:{t+3}], v[{V_P}:{V_P+1}], v[{a1}:{a1+3}]",
            ]
    issue_v(slot)
    for m in pend:
        e(m)


def issue_partial_loads():
    e(f"s_and_b32 s{S_T2}, s{S_FB}, 7")
    e(f"s_lshl_b32 s{S_T2}, s{S_T2}, 1")
    e(f"s_add_u32 s{S_T2}, s{S_T2}, s{S_COL2}")
    e(f"s_lshl_b32 s{S_T2+1}, s{S_KVH}, 2")
    e(f"s_add_u32 s{S_T2+1}, s{S_T2+1}, s{S_GRP}")
    e(f"s_lshl_b32 s{S_T2+1}, s{S_T2+1}, 17")
    e(f"s_lshl_b32 s{S_T2+2}, s{S_T2}, 10")
    e(f"s_add_u32 s{S_T2+2}, s{S_T2+2}, s{S_T2+1}")
    e(f"s_lshl_b32 s{S_T2+3}, s{S_T2}, 2")
    e(f"s_add_u32 s{S_T2+3}, s{S_T2+3}, s{S_T2+1}")
    e(f"s_add_u32 s{S_T2+3}, s{S_T2+3}, 0x4000")
    for c in range(4):
        r = 32 + 4 * c
        ina, nxt = lab("ina"), lab("nxt")
        e(f"s_bitcmp1_b32 s{S_ACT}, {c}")
        e(f"s_cbranch_scc0 {ina}")
        e(f"buffer_load_dword v{r}, v24, s[{S_WS}:{S_WS+3}], s{S_T2+2} offen sc1")
        e(f"buffer_load_dword v{r+1}, v24, s[{S_WS}:{S_WS+3}], s{S_T2+2} offen offset:64 sc1")
        e(f"buffer_load_dword v{r+2}, v25, s[{S_WS}:{S_WS+3}], s{S_T2+3} offen sc1")
        e(f"buffer_load_dword v{r+3}, v25, s[{S_WS}:{S_WS+3}], s{S_T2+3} offen offset:64 sc1")
        e(f"s_branch {nxt}")
        e(f"{ina}:")
        e(f"v_mov_b32 v{r}, 0")
        e(f"v_mov_b32 v{r+1}, 0")
        e(f"v_mov_b32 v{r+2}, {M_INIT:#x}")
        e(f"v_mov_b32 v{r+3}, 0")
        e(f"{nxt}:")
        if c < 3:
            e(f"s_add_u32 s{S_T2+2}, s{S_T2+2}, {SLOT}")
            e(f"s_add_u32 s{S_T2+3}, s{S_T2+3}, {SLOT}")


def final_combine():
    e("s_waitcnt vmcnt(0)")
    e("v_max3_f32 v27, v22, v34, v38")
    e("v_max3_f32 v27, v27, v42, v46")
    e("v_sub_f32 v22, v22, v27")
    for c in range(4):
        e(f"v_sub_f32 v{34+4*c}, v{34+4*c}, v27")
    e("v_exp_f32 v22, v22")
    for c in range(4):
        e(f"v_exp_f32 v{34+4*c}, v{34+4*c}")
    e("s_nop 0")
    e("v_mul_f32 v20, v20, v22")
    e("v_mul_f32 v21, v21, v22")
    e("v_mul_f32 v23, v23, v22")
    for c in range(4):
        e(f"v_fma_f32 v20, v{32+4*c}, v{34+4*c}, v20")
        e(f"v_fma_f32 v21, v{33+4*c}, v{34+4*c}, v21")
        e(f"v_fma_f32 v23, v{35+4*c}, v{34+4*c}, v23")
    e("v_rcp_f32 v23, v23")
    e("s_nop 0")
    e("v_mul_f32 v20, v20, v23")
    e("v_mul_f32 v21, v21, v23")
    e("v_cvt_pk_bf16_f32 v20, v20, v21")
    e(f"s_lshl_b32 s{S_T2}, s{S_FB}, 4")
    e(f"s_lshl_b32 s{S_T2+1}, s{S_KVH}, 1")
    e(f"s_add_u32 s{S_T2}, s{S_T2}, s{S_T2+1}")
    e(f"s_add_u32 s{S_T2}, s{S_T2}, s{S_COL2}")
    e(f"s_lshl_b32 s{S_T2}, s{S_T2}, 9")
    e(f"buffer_store_dword v20, v26, s[{S_OUT}:{S_OUT+3}], s{S_T2} offen")


def gen():
    hdr = open(OUT + ".ref").read().split("; Override launch geometry")[0]
    L.append(hdr.rstrip())
    L.append("; Override launch geometry by editing the next line (default: block=256,")
    L.append(f"; @launch grid=({NA+NB},1,1) block=(256,1,1) lds={LDS_BYTES}")
    L.append('.amdgcn_target "amdgcn-amd-amdhsa--gfx950"')
    L.append(".text")
    L.append(f".globl {NAME}")
    L.append(".p2align 8")
    L.append(f".type {NAME},@function")
    L.append(f"{NAME}:")
    e(f"s_cmp_ge_u32 s2, {NA+NB}")
    e("s_cbranch_scc1 L_end")
    e("s_load_dwordx16 s[4:19], s[0:1], 0")
    e("v_lshrrev_b32 v1, 6, v0")
    e("v_and_b32 v0, 63, v0")
    e(f"v_readfirstlane_b32 s{S_W}, v1")
    e(f"s_and_b32 s{S_KVH}, s2, 7")
    e(f"s_lshr_b32 s{S_T}, s2, 3")
    e(f"s_lshl_b32 s{S_KVH512}, s{S_KVH}, 9")
    e(f"s_mov_b32 s{S_SELLO}, 0x05040100")
    e(f"s_mov_b32 s{S_SELHI}, 0x07060302")
    e(f"s_cmp_lt_u32 s2, {NA}")
    e("s_cbranch_scc1 L_isA")
    e(f"s_sub_u32 s{S_B}, s{S_T}, {NA//8}")
    e(f"s_lshr_b32 s{S_GRP}, s{S_B}, 3")
    e(f"s_mov_b32 s{S_CHUNK}, 0")
    e(f"s_mov_b32 s{S_ISA}, 0")
    e("s_branch L_dec")
    e("L_isA:")
    e(f"s_lshr_b32 s{S_GRP}, s{S_T}, 2")
    e(f"s_and_b32 s{S_CHUNK}, s{S_T}, 3")
    e(f"s_lshl_b32 s{S_B}, s{S_GRP}, 3")
    e(f"s_mov_b32 s{S_ISA}, 1")
    e("L_dec:")
    e(f"s_lshl_b32 s{S_W16}, s{S_W}, 4")
    e(f"s_lshr_b32 s{S_COL2}, s{S_W}, 1")
    e("v_and_b32 v8, 15, v0")
    e("v_lshrrev_b32 v9, 4, v0")
    e(f"v_lshlrev_b32 v{V_OFFK}, 12, v8")
    e(f"v_lshl_add_u32 v{V_OFFK}, v9, 4, v{V_OFFK}")
    e(f"v_lshlrev_b32 v{V_OFFV}, 14, v9")
    e(f"v_lshl_add_u32 v{V_OFFV}, v8, 4, v{V_OFFV}")
    e("v_lshrrev_b32 v10, 1, v8")
    e(f"v_mul_u32_u24 v10, s{S_ISA}, v10")
    e(f"v_add_u32 v10, s{S_B}, v10")
    e("v_and_b32 v11, 1, v8")
    e("v_lshl_add_u32 v11, v10, 4, v11")
    e("v_lshlrev_b32 v11, 9, v11")
    e("v_lshl_add_u32 v11, v9, 4, v11")
    e("v_lshlrev_b32 v12, 2, v10")
    e("v_and_b32 v13, 31, v0")
    e("v_lshrrev_b32 v14, 5, v0")
    e("v_lshlrev_b32 v13, 4, v13")
    e("v_lshl_add_u32 v14, v14, 9, v13")
    e(f"s_lshl_b32 s{S_T}, s{S_GRP}, 12")
    e(f"s_lshl_b32 s{S_T+1}, s{S_KVH}, 10")
    e(f"s_lshl_b32 s{S_VO}, s{S_B}, 9")
    e(f"s_lshl_b32 s{S_VO+1}, s{S_W}, 2")
    e(f"s_add_u32 s{S_VO}, s{S_VO}, s{S_VO+1}")
    e("s_waitcnt lgkmcnt(0)")
    srd(S_BT, 10, 16384)
    srd(S_CTX, 12, 128)
    srd(S_Q, 4, 262144)
    e(f"buffer_load_dwordx4 v[144:147], v13, s[{S_BT}:{S_BT+3}], s{S_T} offen")
    for i in range(4):
        e(f"buffer_load_dwordx4 v[{128+4*i}:{131+4*i}], v14, s[{S_BT}:{S_BT+3}], s{S_T} offen offset:{i*1024}")
    e(f"buffer_load_dword v{V_PHYS}, v13, s[{S_BT}:{S_BT+3}], s{S_VO} offen")
    e(f"buffer_load_dword v{V_CTX}, v12, s[{S_CTX}:{S_CTX+3}], 0 offen")
    for s in range(8):
        e(f"buffer_load_dwordx4 v[{V_Q+4*s}:{V_Q+4*s+3}], v11, s[{S_Q}:{S_Q+3}], s{S_T+1} offen offset:{s*64}")
    srd(S_K, 6, KV_BYTES)
    srd(S_V, 8, KV_BYTES)
    srd(S_OUT, 14, 262144)
    srd(S_DBG, 16, 256)
    srd(S_WS, 18, WS_BYTES)
    for r in range(64):
        e(f"v_mov_b32 v{V_ACC+r}, 0")
    e(f"v_mov_b32 v{V_M}, {M_INIT:#x}")
    e(f"v_mov_b32 v{V_L}, 0")
    stamp(0)
    e("s_waitcnt vmcnt(9)" if STAMP else "s_waitcnt vmcnt(8)")
    stamp(1)
    for c in range(4):
        for i in range(4):
            e(f"v_cmp_eq_u32 s[{S_C+2*i}:{S_C+2*i+1}], v{128+4*i+c}, v{144+c}")
        e(f"s_and_b64 s[{S_C}:{S_C+1}], s[{S_C}:{S_C+1}], s[{S_C+2}:{S_C+3}]")
        e(f"s_and_b64 s[{S_C+4}:{S_C+5}], s[{S_C+4}:{S_C+5}], s[{S_C+6}:{S_C+7}]")
        e(f"s_and_b64 s[{S_C}:{S_C+1}], s[{S_C}:{S_C+1}], s[{S_C+4}:{S_C+5}]")
        e(f"s_and_b32 s{S_M+c}, s{S_C}, s{S_C+1}")
    e(f"v_cmp_lt_i32 vcc, 0, v{V_CTX}")
    e(f"v_min_i32 v12, 0x800, v{V_CTX}")
    e("v_mov_b32 v13, 0x800")
    e("v_cndmask_b32 v12, v13, v12, vcc")
    e(f"v_mov_b32 v13, {SCALE:#x}")
    e(f"v_cndmask_b32 v{V_SC}, 0, v13, vcc")
    e("v_lshlrev_b32 v9, 2, v9")
    e(f"v_sub_u32 v{V_CTX}, v12, v9")
    e(f"v_readfirstlane_b32 s{S_T2}, v12")
    e(f"s_mov_b32 s{S_MASK}, s{S_M}")
    for c in range(1, 4):
        e(f"s_cmp_eq_u32 s{S_W}, {c}")
        e(f"s_cselect_b32 s{S_MASK}, s{S_M+c}, s{S_MASK}")
    e(f"s_or_b32 s{S_T}, s{S_M}, s{S_M+1}")
    e(f"s_or_b32 s{S_T}, s{S_T}, s{S_M+2}")
    e(f"s_or_b32 s{S_T}, s{S_T}, s{S_M+3}")
    e(f"s_mov_b32 s{S_ACT}, 0")
    for c in range(4):
        e(f"s_and_b32 s{S_T+1}, s{S_T}, {0xff << (8*c):#x}")
        e(f"s_cselect_b32 s{S_T+1}, {1 << c}, 0")
        e(f"s_or_b32 s{S_ACT}, s{S_ACT}, s{S_T+1}")
    e(f"s_bcnt1_i32_b32 s{S_NACT}, s{S_ACT}")
    e(f"s_cmp_eq_u32 s{S_ISA}, 0")
    e("s_cbranch_scc1 L_maskB")
    e(f"s_lshr_b32 s{S_T}, s{S_ACT}, s{S_CHUNK}")
    e(f"s_and_b32 s{S_T}, s{S_T}, 1")
    e("s_cbranch_scc0 L_end")
    e(f"s_lshl_b32 s{S_T}, s{S_CHUNK}, 3")
    e(f"s_lshl_b32 s{S_T}, 0xff, s{S_T}")
    e(f"s_and_b32 s{S_MASK}, s{S_MASK}, s{S_T}")
    e("s_branch L_maskdone")
    e("L_maskB:")
    e(f"s_add_u32 s{S_T2}, s{S_T2}, 15")
    e(f"s_lshr_b32 s{S_T2}, s{S_T2}, 4")
    e(f"s_sub_u32 s{S_T2}, s{S_T2}, s{S_W}")
    e(f"s_add_u32 s{S_T2}, s{S_T2}, 3")
    e(f"s_lshr_b32 s{S_T2}, s{S_T2}, 2")
    e(f"s_bfm_b64 s[{S_T}:{S_T+1}], s{S_T2}, 0")
    e(f"s_andn2_b32 s{S_MASK}, s{S_T}, s{S_MASK}")
    e("L_maskdone:")
    e(f"s_bcnt1_i32_b32 s{S_N}, s{S_MASK}")
    e(f"s_cmp_eq_u32 s{S_N}, 0")
    e("s_cbranch_scc1 L_loop_done")
    issue_k(0)
    issue_v(0)
    issue_k(1)
    issue_v(1)
    e("L_loop:")
    tile(0)
    e(f"s_sub_u32 s{S_N}, s{S_N}, 1")
    e(f"s_cmp_eq_u32 s{S_N}, 0")
    e("s_cbranch_scc1 L_loop_done")
    tile(1)
    e(f"s_sub_u32 s{S_N}, s{S_N}, 1")
    e(f"s_cmp_lg_u32 s{S_N}, 0")
    e("s_cbranch_scc1 L_loop")
    e("L_loop_done:")
    e("s_waitcnt vmcnt(0)")
    stamp(2)
    e(f"s_mov_b32 s{S_FB}, s{S_B}")
    e(f"s_mov_b32 s{S_FAST}, 1")
    e("v_mov_b32 v25, 0")
    e(f"s_lshl_b32 s{S_T2}, s{S_B}, 3")
    e(f"s_add_u32 s{S_T2}, s{S_T2}, s{S_KVH}")
    e(f"s_and_b32 s{S_T2+1}, s{S_T2}, 0xfc")
    e(f"s_and_b32 s{S_T2+2}, s{S_T2}, 3")
    e(f"s_lshl_b32 s{S_T2+2}, s{S_T2+2}, 3")
    e(f"s_cmp_eq_u32 s{S_ISA}, 1")
    e("s_cbranch_scc1 L_nopoll")
    e(f"s_cmp_eq_u32 s{S_NACT}, 0")
    e("s_cbranch_scc1 L_nopoll")
    e(f"buffer_load_dword v28, v25, s[{S_DBG}:{S_DBG+3}], s{S_T2+1} offen sc1")
    e("s_waitcnt vmcnt(0)")
    e(f"v_readfirstlane_b32 s{S_T}, v28")
    e("s_nop 1")
    e(f"s_lshr_b32 s{S_T}, s{S_T}, s{S_T2+2}")
    e(f"s_and_b32 s{S_T}, s{S_T}, 0xff")
    e(f"s_cmp_eq_u32 s{S_T}, s{S_NACT}")
    e(f"s_cselect_b32 s{S_FAST}, 1, 0")
    e("L_nopoll:")
    e(f"v_mov_b32 v{V_T1}, v{V_L}")
    e("s_nop 1")
    e(f"v_permlane16_swap_b32 v{V_L}, v{V_T1}")
    e(f"v_add_f32 v{V_L}, v{V_L}, v{V_T1}")
    e(f"v_mov_b32 v{V_T1}, v{V_L}")
    e("s_nop 1")
    e(f"v_permlane32_swap_b32 v{V_L}, v{V_T1}")
    e(f"v_add_f32 v{V_L}, v{V_L}, v{V_T1}")
    e("v_and_b32 v8, 15, v0")
    e("v_lshrrev_b32 v9, 4, v0")
    e("v_lshlrev_b32 v10, 2, v8")
    e(f"s_lshl_b32 s{S_T}, s{S_W}, 7")
    e(f"v_add_u32 v11, s{S_T}, v10")
    e(f"ds_write_b32 v11, v{V_M} offset:{LDS_ML}")
    e(f"ds_write_b32 v11, v{V_L} offset:{LDS_ML+64}")
    e(f"v_mov_b32 v12, s{S_FAST}")
    e(f"s_lshl_b32 s{S_T}, s{S_W}, 2")
    e(f"v_mov_b32 v13, s{S_T}")
    e(f"ds_write_b32 v13, v12 offset:{LDS_FLAG}")
    e("s_waitcnt lgkmcnt(0)")
    e("s_barrier")
    for w in range(4):
        e(f"ds_read_b32 v{16+w}, v10 offset:{LDS_ML+128*w}")
        e(f"ds_read_b32 v{20+w}, v10 offset:{LDS_ML+128*w+64}")
    e(f"ds_read_b128 v[28:31], v25 offset:{LDS_FLAG}")
    e("v_and_b32 v24, 15, v0")
    e("v_lshrrev_b32 v26, 4, v0")
    e(f"s_and_b32 s{S_T}, s{S_W}, 1")
    e(f"s_lshl_b32 s{S_T+1}, s{S_T}, 9")
    e("v_lshlrev_b32 v27, 7, v26")
    e("v_lshl_add_u32 v24, v24, 2, v27")
    e(f"v_add_u32 v24, s{S_T+1}, v24")
    e("v_and_b32 v27, 3, v0")
    e("v_lshlrev_b32 v27, 4, v27")
    e("v_lshl_add_u32 v27, v26, 2, v27")
    e("v_bfe_u32 v26, v0, 2, 2")
    e("v_lshl_add_u32 v26, v26, 6, v27")
    e(f"s_lshl_b32 s{S_T+1}, s{S_T}, 8")
    e(f"v_add_u32 v26, s{S_T+1}, v26")
    e("s_waitcnt lgkmcnt(0)")
    e("v_and_b32 v28, v28, v29")
    e("v_and_b32 v30, v30, v31")
    e("v_and_b32 v28, v28, v30")
    e("s_nop 0")
    e(f"v_readfirstlane_b32 s{S_FAST}, v28")
    e("v_max3_f32 v12, v16, v17, v18")
    e("v_max_f32 v12, v12, v19")
    for w in range(4):
        e(f"v_sub_f32 v{16+w}, v{16+w}, v12")
    e(f"v_sub_f32 v13, v{V_M}, v12")
    for w in range(4):
        e(f"v_exp_f32 v{16+w}, v{16+w}")
    e("v_exp_f32 v13, v13")
    e("v_mul_f32 v14, v16, v20")
    e("v_fma_f32 v14, v17, v21, v14")
    e("v_fma_f32 v14, v18, v22, v14")
    e("v_fma_f32 v14, v19, v23, v14")
    e(f"s_cmp_eq_u32 s{S_ISA}, 1")
    e("s_cbranch_scc1 L_noearly")
    e(f"s_cmp_eq_u32 s{S_FAST}, 0")
    e("s_cbranch_scc1 L_noearly")
    issue_partial_loads()
    e("L_noearly:")
    for r in range(64):
        e(f"v_mul_f32 v{V_ACC+r}, v13, v{V_ACC+r}")
    e(f"s_lshl_b32 s{S_T}, s{S_W}, 14")
    e("v_lshlrev_b32 v11, 10, v8")
    e("v_lshl_add_u32 v11, v9, 4, v11")
    e(f"v_add_u32 v11, s{S_T}, v11")
    for a in range(16):
        e(f"ds_write_b128 v11, v[{V_ACC+4*a}:{V_ACC+4*a+3}] offset:{LDS_O+a*64}")
    e(f"ds_write_b32 v10, v12 offset:{LDS_FML}")
    e(f"ds_write_b32 v10, v14 offset:{LDS_FML+64}")
    e("s_waitcnt lgkmcnt(0)")
    e("s_barrier")
    e(f"s_cmp_eq_u32 s{S_ISA}, 1")
    e("s_cbranch_scc1 L_A_publish")
    e(f"s_lshl_b32 s{S_T}, s{S_COL2}, 10")
    e(f"v_add_u32 v11, s{S_T}, v24")
    e(f"s_lshl_b32 s{S_T}, s{S_COL2}, 2")
    e(f"v_mov_b32 v10, s{S_T}")
    for w in range(4):
        e(f"v_add_u32 v{56+w}, {LDS_O+16384*w}, v11")
    for w in range(4):
        e(f"ds_read2_b32 v[{48+2*w}:{49+2*w}], v{56+w} offset0:0 offset1:16")
    e(f"ds_read_b32 v22, v10 offset:{LDS_FML}")
    e(f"ds_read_b32 v23, v10 offset:{LDS_FML+64}")
    e("s_waitcnt lgkmcnt(0)")
    e("v_add_f32 v20, v48, v50")
    e("v_add_f32 v21, v49, v51")
    e("v_add_f32 v20, v20, v52")
    e("v_add_f32 v21, v21, v53")
    e("v_add_f32 v20, v20, v54")
    e("v_add_f32 v21, v21, v55")
    e(f"s_cmp_eq_u32 s{S_FAST}, 1")
    e("s_cbranch_scc1 L_B_final")
    e(f"s_lshl_b32 s{S_T}, s{S_B}, 3")
    e(f"s_add_u32 s{S_T}, s{S_T}, s{S_KVH}")
    e(f"s_lshl_b32 s{S_T}, s{S_T}, 12")
    e(f"s_add_u32 s{S_T}, s{S_T}, {BSLOT_BASE}")
    e(f"buffer_store_dword v20, v11, s[{S_WS}:{S_WS+3}], s{S_T} offen sc1")
    e(f"buffer_store_dword v21, v11, s[{S_WS}:{S_WS+3}], s{S_T} offen offset:64 sc1")
    e(f"buffer_store_dword v22, v10, s[{S_WS}:{S_WS+3}], s{S_T} offen offset:2048 sc1")
    e(f"buffer_store_dword v23, v10, s[{S_WS}:{S_WS+3}], s{S_T} offen offset:2112 sc1")
    e("s_waitcnt vmcnt(0)")
    e("s_barrier")
    e(f"s_cmp_lg_u32 s{S_W}, 0")
    e("s_cbranch_scc1 L_B_noatom")
    e(f"s_lshl_b32 s{S_T2}, s{S_B}, 3")
    e(f"s_add_u32 s{S_T2}, s{S_T2}, s{S_KVH}")
    e(f"s_and_b32 s{S_T2+1}, s{S_T2}, 0xfc")
    e(f"s_and_b32 s{S_T2+2}, s{S_T2}, 3")
    e(f"s_lshl_b32 s{S_T2+2}, s{S_T2+2}, 3")
    e(f"s_lshl_b32 s{S_T}, 1, s{S_T2+2}")
    e(f"v_mov_b32 v28, s{S_T}")
    e("v_cmp_eq_u32 vcc, 0, v0")
    e(f"s_and_saveexec_b64 s[{S_C}:{S_C+1}], vcc")
    e(f"buffer_atomic_add v28, v25, s[{S_DBG}:{S_DBG+3}], s{S_T2+1} offen sc0 sc1")
    e("s_waitcnt vmcnt(0)")
    e(f"v_lshrrev_b32 v28, s{S_T2+2}, v28")
    e("v_and_b32 v28, 0xff, v28")
    e(f"ds_write_b32 v25, v28 offset:{LDS_VERD}")
    e(f"s_mov_b64 exec, s[{S_C}:{S_C+1}]")
    e("L_B_noatom:")
    e("s_waitcnt lgkmcnt(0)")
    e("s_barrier")
    e(f"ds_read_b32 v28, v25 offset:{LDS_VERD}")
    e("s_waitcnt lgkmcnt(0)")
    e(f"v_readfirstlane_b32 s{S_T}, v28")
    e("s_nop 1")
    e(f"s_cmp_lg_u32 s{S_T}, s{S_NACT}")
    e("s_cbranch_scc1 L_end")
    issue_partial_loads()
    e("L_B_final:")
    final_combine()
    stamp(3)
    e("s_branch L_end")
    e("L_A_publish:")
    e(f"s_lshl_b32 s{S_T}, s{S_W}, 10")
    e("v_lshlrev_b32 v11, 4, v0")
    e(f"v_add_u32 v11, s{S_T}, v11")
    e(f"s_lshl_b32 s{S_T}, s{S_KVH}, 2")
    e(f"s_add_u32 s{S_T}, s{S_T}, s{S_GRP}")
    e(f"s_lshl_b32 s{S_T}, s{S_T}, 2")
    e(f"s_add_u32 s{S_T}, s{S_T}, s{S_CHUNK}")
    e(f"s_lshl_b32 s{S_T}, s{S_T}, 15")
    for q in range(4):
        for w in range(4):
            e(f"ds_read_b128 v[{32+4*w}:{35+4*w}], v11 offset:{LDS_O+w*16384+q*4096}")
        e("s_waitcnt lgkmcnt(0)")
        for k in range(4):
            e(f"v_add_f32 v{32+k}, v{32+k}, v{36+k}")
            e(f"v_add_f32 v{40+k}, v{40+k}, v{44+k}")
        for k in range(4):
            e(f"v_add_f32 v{48+4*q+k}, v{32+k}, v{40+k}")
        e(f"s_add_u32 s{S_T+1}, s{S_T}, {q*4096}")
        e(f"buffer_store_dwordx4 v[{48+4*q}:{51+4*q}], v11, s[{S_WS}:{S_WS+3}], s{S_T+1} offen sc1")
    e(f"s_cmp_lg_u32 s{S_W}, 0")
    e("s_cbranch_scc1 L_A_noml")
    e("v_lshlrev_b32 v10, 2, v0")
    e("v_cmp_gt_u32 vcc, 32, v0")
    e(f"s_and_saveexec_b64 s[{S_C}:{S_C+1}], vcc")
    e(f"ds_read_b32 v28, v10 offset:{LDS_FML}")
    e("s_waitcnt lgkmcnt(0)")
    e(f"s_add_u32 s{S_T+1}, s{S_T}, 0x4000")
    e(f"buffer_store_dword v28, v10, s[{S_WS}:{S_WS+3}], s{S_T+1} offen sc1")
    e(f"s_mov_b64 exec, s[{S_C}:{S_C+1}]")
    e("L_A_noml:")
    e("s_waitcnt vmcnt(0)")
    stamp(3)
    e("s_barrier")
    e(f"s_cmp_lg_u32 s{S_W}, 0")
    e("s_cbranch_scc1 L_A_noatom")
    e(f"s_and_b32 s{S_T2}, s{S_KVH}, 3")
    e(f"s_lshl_b32 s{S_T2}, s{S_T2}, 3")
    e(f"s_lshl_b32 s{S_T}, 1, s{S_T2}")
    e(f"v_mov_b32 v28, s{S_T}")
    e(f"s_and_b32 s{S_T}, s{S_KVH}, 4")
    e(f"s_lshl_b32 s{S_T+1}, s{S_B}, 3")
    e(f"s_add_u32 s{S_T}, s{S_T}, s{S_T+1}")
    e("v_lshlrev_b32 v10, 3, v0")
    e("v_cmp_gt_u32 vcc, 8, v0")
    e(f"s_and_saveexec_b64 s[{S_C}:{S_C+1}], vcc")
    e(f"buffer_atomic_add v28, v10, s[{S_DBG}:{S_DBG+3}], s{S_T} offen sc0 sc1")
    e("s_waitcnt vmcnt(0)")
    e(f"v_lshrrev_b32 v28, s{S_T2}, v28")
    e("v_and_b32 v28, 0xff, v28")
    e(f"v_cmp_eq_u32 vcc, s{S_NACT}, v28")
    e(f"s_mov_b64 exec, s[{S_C}:{S_C+1}]")
    e("s_and_b32 vcc_lo, vcc_lo, 0xff")
    e("v_mov_b32 v28, vcc_lo")
    e(f"ds_write_b32 v25, v28 offset:{LDS_VERD}")
    e("L_A_noatom:")
    e("s_waitcnt lgkmcnt(0)")
    e("s_barrier")
    e(f"ds_read_b32 v28, v25 offset:{LDS_VERD}")
    e("s_waitcnt lgkmcnt(0)")
    e(f"v_readfirstlane_b32 s{S_LAST}, v28")
    e("s_nop 1")
    e("L_A_lastloop:")
    e(f"s_cmp_eq_u32 s{S_LAST}, 0")
    e("s_cbranch_scc1 L_end")
    e(f"s_ff1_i32_b32 s{S_T}, s{S_LAST}")
    e(f"s_bitset0_b32 s{S_LAST}, s{S_T}")
    e(f"s_add_u32 s{S_FB}, s{S_B}, s{S_T}")
    e(f"s_lshl_b32 s{S_T}, s{S_FB}, 3")
    e(f"s_add_u32 s{S_T}, s{S_T}, s{S_KVH}")
    e(f"s_lshl_b32 s{S_T}, s{S_T}, 12")
    e(f"s_add_u32 s{S_T}, s{S_T}, {BSLOT_BASE}")
    e(f"s_lshl_b32 s{S_T+1}, s{S_COL2}, 10")
    e(f"v_add_u32 v11, s{S_T+1}, v24")
    e(f"s_lshl_b32 s{S_T+1}, s{S_COL2}, 2")
    e(f"v_mov_b32 v10, s{S_T+1}")
    e(f"buffer_load_dword v20, v11, s[{S_WS}:{S_WS+3}], s{S_T} offen sc1")
    e(f"buffer_load_dword v21, v11, s[{S_WS}:{S_WS+3}], s{S_T} offen offset:64 sc1")
    e(f"buffer_load_dword v22, v10, s[{S_WS}:{S_WS+3}], s{S_T} offen offset:2048 sc1")
    e(f"buffer_load_dword v23, v10, s[{S_WS}:{S_WS+3}], s{S_T} offen offset:2112 sc1")
    issue_partial_loads()
    final_combine()
    e("s_branch L_A_lastloop")
    e("L_end:")
    e("s_endpgm")
    L.append('.section .rodata,"a"')
    L.append(".p2align 6")
    L.append(f".amdhsa_kernel {NAME}")
    L.append("  .amdhsa_next_free_vgpr 256")
    L.append("  .amdhsa_next_free_sgpr 100")
    L.append("  .amdhsa_accum_offset 256")
    L.append("  .amdhsa_group_segment_fixed_size 0")
    L.append("  .amdhsa_kernarg_size 64")
    L.append("  .amdhsa_user_sgpr_count 2")
    L.append("  .amdhsa_user_sgpr_kernarg_segment_ptr 1")
    L.append("  .amdhsa_system_sgpr_workgroup_id_x 1")
    L.append(".end_amdhsa_kernel")
    open(OUT, "w").write("\n".join(L) + "\n")


gen()
```

```python
import os
import struct

NAME = "standalone__paged_block_table_kv_radixattention__sampling_kernel"
OUT = "standalone__paged_block_table_kv_radixattention__sampling.s"

KV_BYTES = 2112 * 65536
WS_BYTES = 553648128
NWG = 256
LDS_O = 1024
LDS_ML = 0
LDS_FML = 512
LDS_FLAG = 640
LDS_VERD = 672
LDS_LAST = 676
LDS_BYTES = 84 * 1024
SLOT = 0x8000
BSLOT_BASE = 0x800000
NCH = 8

STAMP = int(os.environ.get("STAMP", "0"))


def f2u(x):
    return struct.unpack("<I", struct.pack("<f", x))[0]


SCALE = f2u(0.0625 * 1.4426950408889634)
NEG_MASK = f2u(-3.0e38)
M_INIT = f2u(-1.0e30)

L = []


def e(s=""):
    L.append("    " + s if s and not s.endswith(":") else s)


V_PHYSB = 0
V_OFFK = 1
V_OFFV = 2
V_PHYSA = 3
V_CTX = 4
V_M = 5
V_L = 6
V_SC = 7
V_S = 8
V_T0 = 12
V_T1 = 13
V_P = 14
V_VT = 16
V_Q = 32
V_ACC = 64
V_K = [128, 192]
V_V = [160, 224]
S_K, S_V, S_Q, S_BT, S_CTX, S_OUT, S_DBG, S_WS = 20, 24, 28, 32, 36, 40, 44, 48
S_W, S_KVH, S_B, S_GRP, S_CHA, S_CGA = 52, 53, 54, 55, 56, 57
S_M = 58
S_MASK, S_N = 62, 63
S_SOFF = [64, 65]
S_J16 = [66, 67]
S_T = 68
S_SELLO, S_SELHI = 70, 71
S_VO = 72
S_KVH512 = 76
S_ACT = 77
S_C = 78
S_NACT = 86
S_W16 = 87
S_COL2 = 88
S_FAST = 89
S_LAST = 90
S_FB = 91
S_T2 = 92
S_MASKB = 96
S_CTXB = 97
S_SCB = 98
S_ACTA = 99
S_NACTA = 100
S_FGRP = 101
NSGPR = 102


def stamp(k):
    if not STAMP:
        return
    e("s_memrealtime s[94:95]")
    e("s_waitcnt lgkmcnt(0)")
    e("s_lshl_b32 s93, s2, 2")
    e(f"s_add_u32 s93, s93, s{S_W}")
    e("s_lshl_b32 s93, s93, 6")
    e(f"s_add_u32 s93, s93, {0x1000000 + k*8}")
    e("v_mov_b32 v16, s94")
    e("v_mov_b32 v17, s95")
    e("v_mov_b32 v18, 0")
    e(f"buffer_store_dwordx2 v[16:17], v18, s[{S_WS}:{S_WS+3}], s93 offen")


def srd(dst, lo, nbytes):
    e(f"s_mov_b32 s{dst}, s{lo}")
    e(f"s_and_b32 s{dst+1}, s{lo+1}, 0xffff")
    e(f"s_mov_b32 s{dst+2}, {nbytes}")
    e(f"s_mov_b32 s{dst+3}, 0x00020000")


uid = [0]


def lab(p):
    uid[0] += 1
    return f"L_{p}_{uid[0]}"


def lane_into(v):
    e(f"v_mbcnt_lo_u32_b32 v{v}, -1, 0")
    e(f"v_mbcnt_hi_u32_b32 v{v}, -1, v{v}")


def issue_k(slot, isA):
    none, go = lab("none"), lab("go")
    nt = "" if isA else " nt"
    vp = V_PHYSA if isA else V_PHYSB
    e(f"s_cmp_eq_u32 s{S_MASK}, 0")
    e(f"s_cbranch_scc1 {none}")
    e(f"s_ff1_i32_b32 s{S_T}, s{S_MASK}")
    e(f"s_bitset0_b32 s{S_MASK}, s{S_T}")
    e(f"v_readlane_b32 s{S_T+1}, v{vp}, s{S_T}")
    e(f"s_lshl_b32 s{S_J16[slot]}, s{S_T}, 6")
    e(f"s_add_u32 s{S_J16[slot]}, s{S_J16[slot]}, s{S_W16}")
    e("s_nop 1")
    e(f"s_lshl_b32 s{S_T+1}, s{S_T+1}, 16")
    e(f"s_add_u32 s{S_SOFF[slot]}, s{S_T+1}, s{S_KVH512}")
    e(f"s_branch {go}")
    e(f"{none}:")
    e(f"s_mov_b32 s{S_SOFF[slot]}, {KV_BYTES}")
    e(f"{go}:")
    for s in range(8):
        r = V_K[slot] + 4 * s
        e(f"buffer_load_dwordx4 v[{r}:{r+3}], v{V_OFFK}, s[{S_K}:{S_K+3}], s{S_SOFF[slot]} offen offset:{s*64}{nt}")


def issue_v(slot, isA):
    nt = "" if isA else " nt"
    e(f"s_add_u32 s{S_VO+1}, s{S_SOFF[slot]}, 0x1000")
    e(f"s_add_u32 s{S_VO+2}, s{S_SOFF[slot]}, 0x2000")
    e(f"s_add_u32 s{S_VO+3}, s{S_SOFF[slot]}, 0x3000")
    for i in range(4):
        so = S_SOFF[slot] if i == 0 else S_VO + i
        for half in range(2):
            r = V_V[slot] + (i * 2 + half) * 4
            e(f"buffer_load_dwordx4 v[{r}:{r+3}], v{V_OFFV}, s[{S_V}:{S_V+3}], s{so} offen offset:{half*256}{nt}")


def tile(slot, isA):
    K, V = V_K[slot], V_V[slot]
    e("s_waitcnt vmcnt(24)")
    for s in range(8):
        c = "0" if s == 0 else f"v[{V_S}:{V_S+3}]"
        e(f"v_mfma_f32_16x16x32_bf16 v[{V_S}:{V_S+3}], v[{K+4*s}:{K+4*s+3}], v[{V_Q+4*s}:{V_Q+4*s+3}], {c}")
    e(f"v_subrev_u32 v{V_T0}, s{S_J16[slot]}, v{V_CTX}")
    issue_k(slot, isA)
    e(f"v_mov_b32 v{V_T1}, {NEG_MASK:#x}")
    e(f"v_cmp_lt_i32 vcc, 0, v{V_T0}")
    e(f"v_mul_f32 v{V_S}, v{V_SC}, v{V_S}")
    e(f"v_mul_f32 v{V_S+1}, v{V_SC}, v{V_S+1}")
    e(f"v_cndmask_b32 v{V_S}, v{V_T1}, v{V_S}, vcc")
    e(f"v_cmp_lt_i32 vcc, 1, v{V_T0}")
    e(f"v_mul_f32 v{V_S+2}, v{V_SC}, v{V_S+2}")
    e(f"v_mul_f32 v{V_S+3}, v{V_SC}, v{V_S+3}")
    e(f"v_cndmask_b32 v{V_S+1}, v{V_T1}, v{V_S+1}, vcc")
    e(f"v_cmp_lt_i32 vcc, 2, v{V_T0}")
    e("s_nop 1")
    e(f"v_cndmask_b32 v{V_S+2}, v{V_T1}, v{V_S+2}, vcc")
    e(f"v_cmp_lt_i32 vcc, 3, v{V_T0}")
    e("s_nop 1")
    e(f"v_cndmask_b32 v{V_S+3}, v{V_T1}, v{V_S+3}, vcc")
    e(f"v_max3_f32 v{V_T0}, v{V_S}, v{V_S+1}, v{V_S+2}")
    e(f"v_max_f32 v{V_T0}, v{V_T0}, v{V_S+3}")
    e(f"v_mov_b32 v{V_T1}, v{V_T0}")
    e("s_nop 1")
    e(f"v_permlane16_swap_b32 v{V_T0}, v{V_T1}")
    e(f"v_max_f32 v{V_T0}, v{V_T0}, v{V_T1}")
    e(f"v_mov_b32 v{V_T1}, v{V_T0}")
    e("s_nop 1")
    e(f"v_permlane32_swap_b32 v{V_T0}, v{V_T1}")
    e(f"v_max3_f32 v{V_T0}, v{V_T0}, v{V_T1}, v{V_M}")
    e(f"v_sub_f32 v{V_T1}, v{V_M}, v{V_T0}")
    e(f"v_exp_f32 v{V_T1}, v{V_T1}")
    e(f"v_mov_b32 v{V_M}, v{V_T0}")
    for r in range(4):
        e(f"v_sub_f32 v{V_S+r}, v{V_S+r}, v{V_T0}")
    for r in range(4):
        e(f"v_exp_f32 v{V_S+r}, v{V_S+r}")
    e(f"v_cmp_neq_f32 vcc, 1.0, v{V_T1}")
    e(f"v_add_f32 v{V_T0}, v{V_S}, v{V_S+1}")
    e(f"v_add_f32 v{V_T0}, v{V_T0}, v{V_S+2}")
    e(f"v_add_f32 v{V_T0}, v{V_T0}, v{V_S+3}")
    e(f"v_fma_f32 v{V_L}, v{V_L}, v{V_T1}, v{V_T0}")
    e(f"v_cvt_pk_bf16_f32 v{V_P}, v{V_S}, v{V_S+1}")
    e(f"v_cvt_pk_bf16_f32 v{V_P+1}, v{V_S+2}, v{V_S+3}")
    skip = lab("nors")
    e(f"s_cbranch_vccz {skip}")
    for r in range(64):
        e(f"v_mul_f32 v{V_ACC+r}, v{V_T1}, v{V_ACC+r}")
    e(f"{skip}:")
    e("s_waitcnt vmcnt(24)")
    n = 0
    pend = []
    for half in range(2):
        for d in range(4):
            t = V_VT + (n % 4) * 4
            n += 1
            T = [V + (i * 2 + half) * 4 + d for i in range(4)]
            e(f"v_perm_b32 v{t}, v{T[1]}, v{T[0]}, s{S_SELLO}")
            e(f"v_perm_b32 v{t+1}, v{T[3]}, v{T[2]}, s{S_SELLO}")
            e(f"v_perm_b32 v{t+2}, v{T[1]}, v{T[0]}, s{S_SELHI}")
            e(f"v_perm_b32 v{t+3}, v{T[3]}, v{T[2]}, s{S_SELHI}")
            for m in pend:
                e(m)
            a0 = V_ACC + (half * 8 + 2 * d) * 4
            a1 = a0 + 4
            pend = [
                f"v_mfma_f32_16x16x16_bf16 v[{a0}:{a0+3}], v[{t}:{t+1}], v[{V_P}:{V_P+1}], v[{a0}:{a0+3}]",
                f"v_mfma_f32_16x16x16_bf16 v[{a1}:{a1+3}], v[{t+2}:{t+3}], v[{V_P}:{V_P+1}], v[{a1}:{a1+3}]",
            ]
    issue_v(slot, isA)
    for m in pend:
        e(m)


def main_loop(isA):
    top, done = lab("loop"), lab("ldone")
    e(f"{top}:")
    tile(0, isA)
    e(f"s_sub_u32 s{S_N}, s{S_N}, 1")
    e(f"s_cmp_eq_u32 s{S_N}, 0")
    e(f"s_cbranch_scc1 {done}")
    tile(1, isA)
    e(f"s_sub_u32 s{S_N}, s{S_N}, 1")
    e(f"s_cmp_lg_u32 s{S_N}, 0")
    e(f"s_cbranch_scc1 {top}")
    e(f"{done}:")


def init_acc():
    for r in range(64):
        e(f"v_mov_b32 v{V_ACC+r}, 0")
    e(f"v_mov_b32 v{V_M}, {M_INIT:#x}")
    e(f"v_mov_b32 v{V_L}, 0")


def group_masks(base_rows, base_row0, act, nact):
    for c in range(4):
        for i in range(4):
            e(f"v_cmp_eq_u32 s[{S_C+2*i}:{S_C+2*i+1}], v{base_rows+4*i+c}, v{base_row0+c}")
        e(f"s_and_b64 s[{S_C}:{S_C+1}], s[{S_C}:{S_C+1}], s[{S_C+2}:{S_C+3}]")
        e(f"s_and_b64 s[{S_C+4}:{S_C+5}], s[{S_C+4}:{S_C+5}], s[{S_C+6}:{S_C+7}]")
        e(f"s_and_b64 s[{S_C}:{S_C+1}], s[{S_C}:{S_C+1}], s[{S_C+4}:{S_C+5}]")
        e(f"s_and_b32 s{S_M+c}, s{S_C}, s{S_C+1}")
    e(f"s_or_b32 s{S_T}, s{S_M}, s{S_M+1}")
    e(f"s_or_b32 s{S_T}, s{S_T}, s{S_M+2}")
    e(f"s_or_b32 s{S_T}, s{S_T}, s{S_M+3}")
    e(f"s_mov_b32 s{act}, 0")
    for c in range(NCH):
        e(f"s_and_b32 s{S_T+1}, s{S_T}, {0xf << (4*c):#x}")
        e(f"s_cselect_b32 s{S_T+1}, {1 << c}, 0")
        e(f"s_or_b32 s{act}, s{act}, s{S_T+1}")
    e(f"s_bcnt1_i32_b32 s{nact}, s{act}")
    e(f"s_mov_b32 s{S_MASK}, s{S_M}")
    for c in range(1, 4):
        e(f"s_cmp_eq_u32 s{S_W}, {c}")
        e(f"s_cselect_b32 s{S_MASK}, s{S_M+c}, s{S_MASK}")


def merge_part1():
    e(f"v_mov_b32 v{V_T1}, v{V_L}")
    e("s_nop 1")
    e(f"v_permlane16_swap_b32 v{V_L}, v{V_T1}")
    e(f"v_add_f32 v{V_L}, v{V_L}, v{V_T1}")
    e(f"v_mov_b32 v{V_T1}, v{V_L}")
    e("s_nop 1")
    e(f"v_permlane32_swap_b32 v{V_L}, v{V_T1}")
    e(f"v_add_f32 v{V_L}, v{V_L}, v{V_T1}")
    lane_into(15)
    e("v_and_b32 v8, 15, v15")
    e("v_lshrrev_b32 v9, 4, v15")
    e("v_lshlrev_b32 v10, 2, v8")
    e(f"s_lshl_b32 s{S_T}, s{S_W}, 7")
    e(f"v_add_u32 v11, s{S_T}, v10")
    e(f"ds_write_b32 v11, v{V_M} offset:{LDS_ML}")
    e(f"ds_write_b32 v11, v{V_L} offset:{LDS_ML+64}")
    e("s_waitcnt lgkmcnt(0)")
    e("s_barrier")
    for w in range(4):
        e(f"ds_read_b32 v{16+w}, v10 offset:{LDS_ML+128*w}")
        e(f"ds_read_b32 v{20+w}, v10 offset:{LDS_ML+128*w+64}")
    e("s_waitcnt lgkmcnt(0)")
    e("v_max3_f32 v12, v16, v17, v18")
    e("v_max_f32 v12, v12, v19")
    for w in range(4):
        e(f"v_sub_f32 v{16+w}, v{16+w}, v12")
    e(f"v_sub_f32 v13, v{V_M}, v12")
    for w in range(4):
        e(f"v_exp_f32 v{16+w}, v{16+w}")
    e("v_exp_f32 v13, v13")
    e("v_mul_f32 v14, v16, v20")
    e("v_fma_f32 v14, v17, v21, v14")
    e("v_fma_f32 v14, v18, v22, v14")
    e("v_fma_f32 v14, v19, v23, v14")


def merge_part2():
    for r in range(64):
        e(f"v_mul_f32 v{V_ACC+r}, v13, v{V_ACC+r}")
    e(f"s_lshl_b32 s{S_T}, s{S_W}, 14")
    e("v_lshlrev_b32 v11, 10, v8")
    e("v_lshl_add_u32 v11, v9, 4, v11")
    e(f"v_add_u32 v11, s{S_T}, v11")
    for a in range(16):
        e(f"ds_write_b128 v11, v[{V_ACC+4*a}:{V_ACC+4*a+3}] offset:{LDS_O+a*64}")
    e(f"ds_write_b32 v10, v12 offset:{LDS_FML}")
    e(f"ds_write_b32 v10, v14 offset:{LDS_FML+64}")


def final_thread_map():
    e("v_mov_b32 v25, 0")
    e("v_and_b32 v24, 15, v15")
    e("v_lshrrev_b32 v26, 4, v15")
    e(f"s_and_b32 s{S_T}, s{S_W}, 1")
    e(f"s_lshl_b32 s{S_T+1}, s{S_T}, 9")
    e("v_lshlrev_b32 v27, 7, v26")
    e("v_lshl_add_u32 v24, v24, 2, v27")
    e(f"v_add_u32 v24, s{S_T+1}, v24")
    e("v_and_b32 v27, 3, v15")
    e("v_lshlrev_b32 v27, 4, v27")
    e("v_lshl_add_u32 v27, v26, 2, v27")
    e("v_bfe_u32 v26, v15, 2, 2")
    e("v_lshl_add_u32 v26, v26, 6, v27")
    e(f"s_lshl_b32 s{S_T+1}, s{S_T}, 8")
    e(f"v_add_u32 v26, s{S_T+1}, v26")


def issue_partial_loads(act):
    e(f"s_and_b32 s{S_T2}, s{S_FB}, 7")
    e(f"s_lshl_b32 s{S_T2}, s{S_T2}, 1")
    e(f"s_add_u32 s{S_T2}, s{S_T2}, s{S_COL2}")
    e(f"s_lshl_b32 s{S_T2+1}, s{S_KVH}, 2")
    e(f"s_add_u32 s{S_T2+1}, s{S_T2+1}, s{S_FGRP}")
    e(f"s_lshl_b32 s{S_T2+1}, s{S_T2+1}, 18")
    e(f"s_lshl_b32 s{S_T2+2}, s{S_T2}, 10")
    e(f"s_add_u32 s{S_T2+2}, s{S_T2+2}, s{S_T2+1}")
    e(f"s_lshl_b32 s{S_T2+3}, s{S_T2}, 2")
    e(f"s_add_u32 s{S_T2+3}, s{S_T2+3}, s{S_T2+1}")
    e(f"s_add_u32 s{S_T2+3}, s{S_T2+3}, 0x4000")
    for c in range(NCH):
        r = 32 + 4 * c
        ina, nxt = lab("ina"), lab("nxt")
        e(f"s_bitcmp1_b32 s{act}, {c}")
        e(f"s_cbranch_scc0 {ina}")
        e(f"buffer_load_dword v{r}, v24, s[{S_WS}:{S_WS+3}], s{S_T2+2} offen sc1")
        e(f"buffer_load_dword v{r+1}, v24, s[{S_WS}:{S_WS+3}], s{S_T2+2} offen offset:64 sc1")
        e(f"buffer_load_dword v{r+2}, v25, s[{S_WS}:{S_WS+3}], s{S_T2+3} offen sc1")
        e(f"buffer_load_dword v{r+3}, v25, s[{S_WS}:{S_WS+3}], s{S_T2+3} offen offset:64 sc1")
        e(f"s_branch {nxt}")
        e(f"{ina}:")
        e(f"v_mov_b32 v{r}, 0")
        e(f"v_mov_b32 v{r+1}, 0")
        e(f"v_mov_b32 v{r+2}, {M_INIT:#x}")
        e(f"v_mov_b32 v{r+3}, 0")
        e(f"{nxt}:")
        if c < NCH - 1:
            e(f"s_add_u32 s{S_T2+2}, s{S_T2+2}, {SLOT}")
            e(f"s_add_u32 s{S_T2+3}, s{S_T2+3}, {SLOT}")


def final_combine():
    e("s_waitcnt vmcnt(0)")
    e("v_max3_f32 v27, v22, v34, v38")
    e("v_max3_f32 v27, v27, v42, v46")
    e("v_max3_f32 v27, v27, v50, v54")
    e("v_max3_f32 v27, v27, v58, v62")
    e("v_sub_f32 v22, v22, v27")
    for c in range(NCH):
        e(f"v_sub_f32 v{34+4*c}, v{34+4*c}, v27")
    e("v_exp_f32 v22, v22")
    for c in range(NCH):
        e(f"v_exp_f32 v{34+4*c}, v{34+4*c}")
    e("s_nop 0")
    e("v_mul_f32 v20, v20, v22")
    e("v_mul_f32 v21, v21, v22")
    e("v_mul_f32 v23, v23, v22")
    for c in range(NCH):
        e(f"v_fma_f32 v20, v{32+4*c}, v{34+4*c}, v20")
        e(f"v_fma_f32 v21, v{33+4*c}, v{34+4*c}, v21")
        e(f"v_fma_f32 v23, v{35+4*c}, v{34+4*c}, v23")
    e("v_rcp_f32 v23, v23")
    e("s_nop 0")
    e("v_mul_f32 v20, v20, v23")
    e("v_mul_f32 v21, v21, v23")
    e("v_cvt_pk_bf16_f32 v20, v20, v21")
    e(f"s_lshl_b32 s{S_T2}, s{S_FB}, 4")
    e(f"s_lshl_b32 s{S_T2+1}, s{S_KVH}, 1")
    e(f"s_add_u32 s{S_T2}, s{S_T2}, s{S_T2+1}")
    e(f"s_add_u32 s{S_T2}, s{S_T2}, s{S_COL2}")
    e(f"s_lshl_b32 s{S_T2}, s{S_T2}, 9")
    e(f"buffer_store_dword v20, v26, s[{S_OUT}:{S_OUT+3}], s{S_T2} offen")


def b_prefetch():
    lane_into(16)
    e("v_and_b32 v17, 1, v16")
    e("v_lshrrev_b32 v18, 4, v16")
    e("v_lshlrev_b32 v17, 9, v17")
    e("v_lshl_add_u32 v17, v18, 4, v17")
    e(f"s_lshl_b32 s{S_T}, s{S_B}, 13")
    e(f"s_lshl_b32 s{S_T+1}, s{S_KVH}, 10")
    e(f"s_add_u32 s{S_T}, s{S_T}, s{S_T+1}")
    for s in range(8):
        e(f"buffer_load_dwordx4 v[{V_Q+4*s}:{V_Q+4*s+3}], v17, s[{S_Q}:{S_Q+3}], s{S_T} offen offset:{s*64}")
    e("v_lshlrev_b32 v18, 2, v18")
    e(f"v_sub_u32 v{V_CTX}, s{S_CTXB}, v18")
    e(f"v_mov_b32 v{V_SC}, s{S_SCB}")
    e(f"s_mov_b32 s{S_MASK}, s{S_MASKB}")
    issue_k(0, False)
    issue_v(0, False)
    issue_k(1, False)
    issue_v(1, False)


def gen():
    hdr = open(OUT + ".ref").read().split("; Override launch geometry")[0]
    L.append(hdr.rstrip())
    L.append("; Override launch geometry by editing the next line (default: block=256,")
    L.append(f"; @launch grid=({NWG},1,1) block=(256,1,1) lds={LDS_BYTES}")
    L.append('.amdgcn_target "amdgcn-amd-amdhsa--gfx950"')
    L.append(".text")
    L.append(f".globl {NAME}")
    L.append(".p2align 8")
    L.append(f".type {NAME},@function")
    L.append(f"{NAME}:")
    e(f"s_cmp_ge_u32 s2, {NWG}")
    e("s_cbranch_scc1 L_end")
    e("s_load_dwordx16 s[4:19], s[0:1], 0")
    e("v_lshrrev_b32 v1, 6, v0")
    e("v_and_b32 v15, 63, v0")
    e(f"v_readfirstlane_b32 s{S_W}, v1")
    e(f"s_and_b32 s{S_KVH}, s2, 7")
    e(f"s_lshr_b32 s{S_B}, s2, 3")
    e(f"s_lshr_b32 s{S_GRP}, s{S_B}, 3")
    e(f"s_lshl_b32 s{S_KVH512}, s{S_KVH}, 9")
    e(f"s_mov_b32 s{S_SELLO}, 0x05040100")
    e(f"s_mov_b32 s{S_SELHI}, 0x07060302")
    e(f"s_lshl_b32 s{S_W16}, s{S_W}, 4")
    e(f"s_lshr_b32 s{S_COL2}, s{S_W}, 1")
    e("v_and_b32 v8, 15, v15")
    e("v_lshrrev_b32 v9, 4, v15")
    e(f"v_lshlrev_b32 v{V_OFFK}, 12, v8")
    e(f"v_lshl_add_u32 v{V_OFFK}, v9, 4, v{V_OFFK}")
    e(f"v_lshlrev_b32 v{V_OFFV}, 14, v9")
    e(f"v_lshl_add_u32 v{V_OFFV}, v8, 4, v{V_OFFV}")
    e("v_lshlrev_b32 v12, 2, v15")
    e("v_and_b32 v13, 31, v15")
    e("v_lshrrev_b32 v14, 5, v15")
    e("v_lshlrev_b32 v13, 4, v13")
    e("v_lshl_add_u32 v14, v14, 9, v13")
    e(f"s_lshl_b32 s{S_T}, s{S_GRP}, 12")
    e(f"s_lshl_b32 s{S_VO}, s{S_B}, 9")
    e(f"s_lshl_b32 s{S_VO+1}, s{S_W}, 2")
    e(f"s_add_u32 s{S_VO}, s{S_VO}, s{S_VO+1}")
    e("s_waitcnt lgkmcnt(0)")
    srd(S_CTX, 12, 128)
    srd(S_BT, 10, 16384)
    e(f"buffer_load_dword v10, v12, s[{S_CTX}:{S_CTX+3}], 0 offen")
    e(f"buffer_load_dwordx4 v[144:147], v13, s[{S_BT}:{S_BT+3}], s{S_T} offen")
    for i in range(4):
        e(f"buffer_load_dwordx4 v[{128+4*i}:{131+4*i}], v14, s[{S_BT}:{S_BT+3}], s{S_T} offen offset:{i*1024}")
    e(f"buffer_load_dword v{V_PHYSB}, v13, s[{S_BT}:{S_BT+3}], s{S_VO} offen")
    srd(S_Q, 4, 262144)
    srd(S_K, 6, KV_BYTES)
    srd(S_V, 8, KV_BYTES)
    srd(S_OUT, 14, 262144)
    srd(S_DBG, 16, 256)
    srd(S_WS, 18, WS_BYTES)
    stamp(0)
    e("s_waitcnt vmcnt(7)" if STAMP else "s_waitcnt vmcnt(6)")
    e(f"v_readlane_b32 s{S_T2}, v10, s{S_B}")
    e(f"s_bfm_b32 s{S_T2+1}, s{S_B}, 0")
    e("s_nop 1")
    e(f"v_cmp_gt_i32 s[{S_C}:{S_C+1}], s{S_T2}, v10")
    e(f"v_cmp_eq_u32 s[{S_C+2}:{S_C+3}], s{S_T2}, v10")
    e(f"s_and_b32 s{S_C+2}, s{S_C+2}, s{S_T2+1}")
    e(f"s_or_b32 s{S_C}, s{S_C}, s{S_C+2}")
    e(f"s_bcnt1_i32_b32 s{S_T}, s{S_C}")
    e(f"s_lshr_b32 s{S_CHA}, s{S_T}, 2")
    e(f"s_and_b32 s{S_CGA}, s{S_T}, 3")
    e(f"s_min_i32 s{S_CTXB}, s{S_T2}, 0x800")
    e(f"s_cmp_gt_i32 s{S_T2}, 0")
    e(f"s_cselect_b32 s{S_CTXB}, s{S_CTXB}, 0x800")
    e(f"s_cselect_b32 s{S_SCB}, {SCALE:#x}, 0")
    e(f"s_lshl_b32 s{S_T}, s{S_CGA}, 12")
    e(f"s_lshl_b32 s{S_VO+1}, s{S_W}, 2")
    e(f"s_add_u32 s{S_VO}, s{S_T}, s{S_VO+1}")
    e(f"buffer_load_dwordx4 v[176:179], v13, s[{S_BT}:{S_BT+3}], s{S_T} offen")
    for i in range(4):
        e(f"buffer_load_dwordx4 v[{160+4*i}:{163+4*i}], v14, s[{S_BT}:{S_BT+3}], s{S_T} offen offset:{i*1024}")
    e(f"buffer_load_dword v{V_PHYSA}, v13, s[{S_BT}:{S_BT+3}], s{S_VO} offen")
    e("v_lshrrev_b32 v10, 1, v8")
    e("v_lshlrev_b32 v12, 2, v10")
    e(f"s_lshl_b32 s{S_T}, s{S_CGA}, 5")
    e(f"buffer_load_dword v{V_CTX}, v12, s[{S_CTX}:{S_CTX+3}], s{S_T} offen")
    e("v_lshlrev_b32 v11, 9, v8")
    e("v_and_b32 v12, 1, v8")
    e("v_lshlrev_b32 v11, 13, v10")
    e("v_lshl_add_u32 v11, v12, 9, v11")
    e("v_lshl_add_u32 v11, v9, 4, v11")
    e(f"s_lshl_b32 s{S_T}, s{S_CGA}, 16")
    e(f"s_lshl_b32 s{S_T+1}, s{S_KVH}, 10")
    e(f"s_add_u32 s{S_T}, s{S_T}, s{S_T+1}")
    for s in range(8):
        e(f"buffer_load_dwordx4 v[{V_Q+4*s}:{V_Q+4*s+3}], v11, s[{S_Q}:{S_Q+3}], s{S_T} offen offset:{s*64}")
    e("s_waitcnt vmcnt(15)")
    group_masks(128, 144, S_ACT, S_NACT)
    e(f"s_add_u32 s{S_T2}, s{S_CTXB}, 15")
    e(f"s_lshr_b32 s{S_T2}, s{S_T2}, 4")
    e(f"s_sub_u32 s{S_T2}, s{S_T2}, s{S_W}")
    e(f"s_add_u32 s{S_T2}, s{S_T2}, 3")
    e(f"s_lshr_b32 s{S_T2}, s{S_T2}, 2")
    e(f"s_bfm_b64 s[{S_T}:{S_T+1}], s{S_T2}, 0")
    e(f"s_andn2_b32 s{S_MASKB}, s{S_T}, s{S_MASK}")
    init_acc()
    e(f"s_mov_b32 s{S_LAST}, 0")
    e("s_waitcnt vmcnt(8)")
    group_masks(160, 176, S_ACTA, S_NACTA)
    e(f"s_lshr_b32 s{S_T}, s{S_ACTA}, s{S_CHA}")
    e(f"s_and_b32 s{S_T}, s{S_T}, 1")
    e("s_cbranch_scc0 L_noA")
    stamp(1)
    e(f"s_lshl_b32 s{S_T}, s{S_CHA}, 2")
    e(f"s_lshl_b32 s{S_T}, 0xf, s{S_T}")
    e(f"s_and_b32 s{S_MASK}, s{S_MASK}, s{S_T}")
    e(f"s_bcnt1_i32_b32 s{S_N}, s{S_MASK}")
    e(f"v_cmp_lt_i32 vcc, 0, v{V_CTX}")
    e(f"v_min_i32 v12, 0x800, v{V_CTX}")
    e("v_mov_b32 v13, 0x800")
    e("v_cndmask_b32 v12, v13, v12, vcc")
    e(f"v_mov_b32 v13, {SCALE:#x}")
    e(f"v_cndmask_b32 v{V_SC}, 0, v13, vcc")
    e("v_lshlrev_b32 v9, 2, v9")
    e(f"v_sub_u32 v{V_CTX}, v12, v9")
    e(f"s_cmp_eq_u32 s{S_N}, 0")
    e("s_cbranch_scc1 L_A_loopdone")
    issue_k(0, True)
    issue_v(0, True)
    issue_k(1, True)
    issue_v(1, True)
    main_loop(True)
    e("L_A_loopdone:")
    e("s_waitcnt vmcnt(0)")
    stamp(2)
    merge_part1()
    merge_part2()
    e("s_waitcnt lgkmcnt(0)")
    e("s_barrier")
    e(f"s_lshl_b32 s{S_T}, s{S_W}, 10")
    e("v_lshlrev_b32 v11, 4, v15")
    e(f"v_add_u32 v11, s{S_T}, v11")
    e(f"s_lshl_b32 s{S_T}, s{S_KVH}, 2")
    e(f"s_add_u32 s{S_T}, s{S_T}, s{S_CGA}")
    e(f"s_lshl_b32 s{S_T}, s{S_T}, 3")
    e(f"s_add_u32 s{S_T}, s{S_T}, s{S_CHA}")
    e(f"s_lshl_b32 s{S_T}, s{S_T}, 15")
    for q in range(4):
        for w in range(4):
            e(f"ds_read_b128 v[{64+16*q+4*w}:{67+16*q+4*w}], v11 offset:{LDS_O+w*16384+q*4096}")
    e("v_lshlrev_b32 v10, 2, v15")
    e(f"ds_read_b32 v28, v10 offset:{LDS_FML}")
    e("s_waitcnt lgkmcnt(0)")
    for q in range(4):
        b = 64 + 16 * q
        for k in range(4):
            e(f"v_add_f32 v{b+k}, v{b+k}, v{b+4+k}")
            e(f"v_add_f32 v{b+8+k}, v{b+8+k}, v{b+12+k}")
        for k in range(4):
            e(f"v_add_f32 v{b+k}, v{b+k}, v{b+8+k}")
        e(f"s_add_u32 s{S_T+1}, s{S_T}, {q*4096}")
        e(f"buffer_store_dwordx4 v[{b}:{b+3}], v11, s[{S_WS}:{S_WS+3}], s{S_T+1} offen sc1")
    e(f"s_add_u32 s{S_T+1}, s{S_T}, 0x4000")
    e(f"s_cmp_lg_u32 s{S_W}, 0")
    e("s_cbranch_scc1 L_A_noml")
    e("v_cmp_gt_u32 vcc, 32, v15")
    e(f"s_and_saveexec_b64 s[{S_C}:{S_C+1}], vcc")
    e(f"buffer_store_dword v28, v10, s[{S_WS}:{S_WS+3}], s{S_T+1} offen sc1")
    e(f"s_mov_b64 exec, s[{S_C}:{S_C+1}]")
    e("L_A_noml:")
    b_prefetch()
    e("s_waitcnt vmcnt(40)")
    e("s_barrier")
    init_acc()
    e(f"s_cmp_lg_u32 s{S_W}, 0")
    e("s_cbranch_scc1 L_B_start")
    lane_into(15)
    e(f"s_and_b32 s{S_T2}, s{S_KVH}, 3")
    e(f"s_lshl_b32 s{S_T2}, s{S_T2}, 3")
    e(f"s_lshl_b32 s{S_T}, 1, s{S_T2}")
    e(f"v_mov_b32 v28, s{S_T}")
    e(f"s_and_b32 s{S_T}, s{S_KVH}, 4")
    e(f"s_lshl_b32 s{S_T+1}, s{S_CGA}, 6")
    e(f"s_add_u32 s{S_T}, s{S_T}, s{S_T+1}")
    e("v_lshlrev_b32 v10, 3, v15")
    e("v_cmp_gt_u32 vcc, 8, v15")
    e(f"s_and_saveexec_b64 s[{S_C}:{S_C+1}], vcc")
    e(f"buffer_atomic_add v28, v10, s[{S_DBG}:{S_DBG+3}], s{S_T} offen sc0 sc1")
    e("s_waitcnt vmcnt(0)")
    e(f"v_lshrrev_b32 v28, s{S_T2}, v28")
    e("v_and_b32 v28, 0xff, v28")
    e(f"v_cmp_eq_u32 vcc, s{S_NACTA}, v28")
    e(f"s_mov_b64 exec, s[{S_C}:{S_C+1}]")
    e(f"s_and_b32 s{S_LAST}, vcc_lo, 0xff")
    e("s_branch L_B_start")
    e("L_noA:")
    e("s_waitcnt vmcnt(0)")
    stamp(1)
    b_prefetch()
    e("L_B_start:")
    e(f"s_bcnt1_i32_b32 s{S_N}, s{S_MASKB}")
    e(f"s_cmp_eq_u32 s{S_N}, 0")
    e("s_cbranch_scc1 L_B_loopdone")
    main_loop(False)
    e("L_B_loopdone:")
    e("s_waitcnt vmcnt(0)")
    stamp(3)
    e(f"s_mov_b32 s{S_FB}, s{S_B}")
    e(f"s_mov_b32 s{S_FGRP}, s{S_GRP}")
    e(f"s_mov_b32 s{S_FAST}, 1")
    e("v_mov_b32 v25, 0")
    e(f"s_lshl_b32 s{S_T2}, s{S_B}, 3")
    e(f"s_add_u32 s{S_T2}, s{S_T2}, s{S_KVH}")
    e(f"s_and_b32 s{S_T2+1}, s{S_T2}, 0xfc")
    e(f"buffer_load_dword v28, v25, s[{S_DBG}:{S_DBG+3}], s{S_T2+1} offen sc1")
    merge_part1()
    final_thread_map()
    e("s_waitcnt vmcnt(0)")
    e(f"s_cmp_eq_u32 s{S_NACT}, 0")
    e("s_cbranch_scc1 L_B_early")
    e(f"v_readfirstlane_b32 s{S_T}, v28")
    e(f"s_and_b32 s{S_T2+2}, s{S_KVH}, 3")
    e(f"s_lshl_b32 s{S_T2+2}, s{S_T2+2}, 3")
    e(f"s_lshr_b32 s{S_T}, s{S_T}, s{S_T2+2}")
    e(f"s_and_b32 s{S_T}, s{S_T}, 0xff")
    e(f"s_cmp_eq_u32 s{S_T}, s{S_NACT}")
    e(f"s_cselect_b32 s{S_FAST}, 1, 0")
    e("s_cbranch_scc0 L_B_noearly")
    e("L_B_early:")
    issue_partial_loads(S_ACT)
    e("L_B_noearly:")
    merge_part2()
    e(f"v_mov_b32 v12, s{S_FAST}")
    e(f"s_lshl_b32 s{S_T}, s{S_W}, 2")
    e(f"v_mov_b32 v13, s{S_T}")
    e(f"ds_write_b32 v13, v12 offset:{LDS_FLAG}")
    e(f"s_cmp_lg_u32 s{S_W}, 0")
    e("s_cbranch_scc1 L_B_nolast")
    e(f"v_mov_b32 v12, s{S_LAST}")
    e(f"ds_write_b32 v25, v12 offset:{LDS_LAST}")
    e("L_B_nolast:")
    e("s_waitcnt lgkmcnt(0)")
    e("s_barrier")
    e(f"s_lshl_b32 s{S_T}, s{S_COL2}, 10")
    e(f"v_add_u32 v11, s{S_T}, v24")
    e(f"s_lshl_b32 s{S_T}, s{S_COL2}, 2")
    e(f"v_mov_b32 v10, s{S_T}")
    for w in range(4):
        e(f"v_add_u32 v{72+w}, {LDS_O+16384*w}, v11")
    for w in range(4):
        e(f"ds_read2_b32 v[{64+2*w}:{65+2*w}], v{72+w} offset0:0 offset1:16")
    e(f"ds_read_b32 v22, v10 offset:{LDS_FML}")
    e(f"ds_read_b32 v23, v10 offset:{LDS_FML+64}")
    e(f"ds_read_b128 v[28:31], v25 offset:{LDS_FLAG}")
    e(f"ds_read_b32 v16, v25 offset:{LDS_LAST}")
    e("s_waitcnt lgkmcnt(0)")
    e("v_and_b32 v28, v28, v29")
    e("v_and_b32 v30, v30, v31")
    e("v_and_b32 v28, v28, v30")
    e("v_add_f32 v20, v64, v66")
    e(f"v_readfirstlane_b32 s{S_FAST}, v28")
    e(f"v_readfirstlane_b32 s{S_LAST}, v16")
    e("v_add_f32 v21, v65, v67")
    e("v_add_f32 v20, v20, v68")
    e("v_add_f32 v21, v21, v69")
    e("v_add_f32 v20, v20, v70")
    e("v_add_f32 v21, v21, v71")
    e(f"s_cmp_eq_u32 s{S_FAST}, 1")
    e("s_cbranch_scc1 L_B_final")
    e(f"s_lshl_b32 s{S_T}, s{S_B}, 3")
    e(f"s_add_u32 s{S_T}, s{S_T}, s{S_KVH}")
    e(f"s_lshl_b32 s{S_T}, s{S_T}, 12")
    e(f"s_add_u32 s{S_T}, s{S_T}, {BSLOT_BASE}")
    e(f"buffer_store_dword v20, v11, s[{S_WS}:{S_WS+3}], s{S_T} offen sc1")
    e(f"buffer_store_dword v21, v11, s[{S_WS}:{S_WS+3}], s{S_T} offen offset:64 sc1")
    e(f"buffer_store_dword v22, v10, s[{S_WS}:{S_WS+3}], s{S_T} offen offset:2048 sc1")
    e(f"buffer_store_dword v23, v10, s[{S_WS}:{S_WS+3}], s{S_T} offen offset:2112 sc1")
    e("s_waitcnt vmcnt(0)")
    e("s_barrier")
    e(f"s_cmp_lg_u32 s{S_W}, 0")
    e("s_cbranch_scc1 L_B_noatom")
    e(f"s_lshl_b32 s{S_T2}, s{S_B}, 3")
    e(f"s_add_u32 s{S_T2}, s{S_T2}, s{S_KVH}")
    e(f"s_and_b32 s{S_T2+1}, s{S_T2}, 0xfc")
    e(f"s_and_b32 s{S_T2+2}, s{S_T2}, 3")
    e(f"s_lshl_b32 s{S_T2+2}, s{S_T2+2}, 3")
    e(f"s_lshl_b32 s{S_T}, 1, s{S_T2+2}")
    e(f"v_mov_b32 v28, s{S_T}")
    e("v_cmp_eq_u32 vcc, 0, v15")
    e(f"s_and_saveexec_b64 s[{S_C}:{S_C+1}], vcc")
    e(f"buffer_atomic_add v28, v25, s[{S_DBG}:{S_DBG+3}], s{S_T2+1} offen sc0 sc1")
    e("s_waitcnt vmcnt(0)")
    e(f"v_lshrrev_b32 v28, s{S_T2+2}, v28")
    e("v_and_b32 v28, 0xff, v28")
    e(f"ds_write_b32 v25, v28 offset:{LDS_VERD}")
    e(f"s_mov_b64 exec, s[{S_C}:{S_C+1}]")
    e("L_B_noatom:")
    e("s_waitcnt lgkmcnt(0)")
    e("s_barrier")
    e(f"ds_read_b32 v28, v25 offset:{LDS_VERD}")
    e("s_waitcnt lgkmcnt(0)")
    e(f"v_readfirstlane_b32 s{S_T}, v28")
    e("s_nop 1")
    e(f"s_cmp_lg_u32 s{S_T}, s{S_NACT}")
    e("s_cbranch_scc1 L_lastloop")
    issue_partial_loads(S_ACT)
    e("L_B_final:")
    final_combine()
    stamp(4)
    e("L_lastloop:")
    e(f"s_cmp_eq_u32 s{S_LAST}, 0")
    e("s_cbranch_scc1 L_end")
    e(f"s_ff1_i32_b32 s{S_T}, s{S_LAST}")
    e(f"s_bitset0_b32 s{S_LAST}, s{S_T}")
    e(f"s_lshl_b32 s{S_FB}, s{S_CGA}, 3")
    e(f"s_add_u32 s{S_FB}, s{S_FB}, s{S_T}")
    e(f"s_mov_b32 s{S_FGRP}, s{S_CGA}")
    e(f"s_lshl_b32 s{S_T}, s{S_FB}, 3")
    e(f"s_add_u32 s{S_T}, s{S_T}, s{S_KVH}")
    e(f"s_lshl_b32 s{S_T}, s{S_T}, 12")
    e(f"s_add_u32 s{S_T}, s{S_T}, {BSLOT_BASE}")
    e(f"s_lshl_b32 s{S_T+1}, s{S_COL2}, 10")
    e(f"v_add_u32 v11, s{S_T+1}, v24")
    e(f"s_lshl_b32 s{S_T+1}, s{S_COL2}, 2")
    e(f"v_mov_b32 v10, s{S_T+1}")
    e("s_waitcnt vmcnt(0)")
    e(f"buffer_load_dword v20, v11, s[{S_WS}:{S_WS+3}], s{S_T} offen sc1")
    e(f"buffer_load_dword v21, v11, s[{S_WS}:{S_WS+3}], s{S_T} offen offset:64 sc1")
    e(f"buffer_load_dword v22, v10, s[{S_WS}:{S_WS+3}], s{S_T} offen offset:2048 sc1")
    e(f"buffer_load_dword v23, v10, s[{S_WS}:{S_WS+3}], s{S_T} offen offset:2112 sc1")
    issue_partial_loads(S_ACTA)
    final_combine()
    e("s_branch L_lastloop")
    e("L_end:")
    e("s_endpgm")
    L.append('.section .rodata,"a"')
    L.append(".p2align 6")
    L.append(f".amdhsa_kernel {NAME}")
    L.append("  .amdhsa_next_free_vgpr 256")
    L.append(f"  .amdhsa_next_free_sgpr {NSGPR}")
    L.append("  .amdhsa_accum_offset 256")
    L.append("  .amdhsa_group_segment_fixed_size 0")
    L.append("  .amdhsa_kernarg_size 64")
    L.append("  .amdhsa_user_sgpr_count 2")
    L.append("  .amdhsa_user_sgpr_kernarg_segment_ptr 1")
    L.append("  .amdhsa_system_sgpr_workgroup_id_x 1")
    L.append(".end_amdhsa_kernel")
    open(OUT, "w").write("\n".join(L) + "\n")


gen()
```

```python
import os
import struct

NAME = "standalone__paged_block_table_kv_radixattention__sampling_kernel"
OUT = "standalone__paged_block_table_kv_radixattention__sampling.s"

KV_BYTES = 2112 * 65536
WS_BYTES = 553648128
NWG = 256
LDS_O = 1024
CSTR = 1040
WSTR = 16 * CSTR
LDS_ML = 0
LDS_FML = 512
LDS_FLAG = 640
LDS_VERD = 672
LDS_LAST = 676
LDS_BYTES = 84 * 1024
SLOT = 0x8000
BSLOT_BASE = 0x800000
NCH = 8

STAMP = int(os.environ.get("STAMP", "0"))
NTA = os.environ.get("NTA", "")
NTB = os.environ.get("NTB", " nt")


def f2u(x):
    return struct.unpack("<I", struct.pack("<f", x))[0]


SCALE = f2u(0.0625 * 1.4426950408889634)
NEG_MASK = f2u(-3.0e38)
M_INIT = f2u(-1.0e30)

L = []


def e(s=""):
    L.append("    " + s if s and not s.endswith(":") else s)


V_PHYSB = 0
V_OFFK = 1
V_OFFV = 2
V_PHYSA = 3
V_CTX = 4
V_M = 5
V_L = 6
V_SC = 7
V_S = 8
V_T0 = 12
V_T1 = 13
V_P = 14
V_VT = 16
V_Q = 32
V_ACC = 64
V_K = [128, 192]
V_V = [160, 224]
S_K, S_V, S_Q, S_BT, S_CTX, S_OUT, S_DBG, S_WS = 20, 24, 28, 32, 36, 40, 44, 48
S_W, S_KVH, S_B, S_GRP, S_CHA, S_CGA = 52, 53, 54, 55, 56, 57
S_M = 58
S_MASK, S_N = 62, 63
S_SOFF = [64, 65]
S_J16 = [66, 67]
S_T = 68
S_SELLO, S_SELHI = 70, 71
S_VO = 72
S_KVH512 = 76
S_ACT = 77
S_C = 78
S_NACT = 86
S_W16 = 87
S_COL2 = 88
S_FAST = 89
S_LAST = 90
S_FB = 91
S_T2 = 92
S_MASKB = 96
S_CTXB = 97
S_SCB = 98
S_ACTA = 99
S_NACTA = 100
S_POLL = 3
S_FGRP = 101
NSGPR = 102


def stamp(k):
    if not STAMP:
        return
    e("s_memrealtime s[94:95]")
    e("s_waitcnt lgkmcnt(0)")
    e("s_lshl_b32 s93, s2, 2")
    e(f"s_add_u32 s93, s93, s{S_W}")
    e("s_lshl_b32 s93, s93, 6")
    e(f"s_add_u32 s93, s93, {0x1000000 + k*8}")
    e("v_mov_b32 v16, s94")
    e("v_mov_b32 v17, s95")
    e("v_mov_b32 v18, 0")
    e(f"buffer_store_dwordx2 v[16:17], v18, s[{S_WS}:{S_WS+3}], s93 offen")


def srd(dst, lo, nbytes):
    e(f"s_mov_b32 s{dst}, s{lo}")
    e(f"s_and_b32 s{dst+1}, s{lo+1}, 0xffff")
    e(f"s_mov_b32 s{dst+2}, {nbytes}")
    e(f"s_mov_b32 s{dst+3}, 0x00020000")


uid = [0]


def lab(p):
    uid[0] += 1
    return f"L_{p}_{uid[0]}"


def lane_into(v):
    e(f"v_mbcnt_lo_u32_b32 v{v}, -1, 0")
    e(f"v_mbcnt_hi_u32_b32 v{v}, -1, v{v}")


def issue_k(slot, isA):
    none, go = lab("none"), lab("go")
    nt = NTA if isA else NTB
    vp = V_PHYSA if isA else V_PHYSB
    e(f"s_cmp_eq_u32 s{S_MASK}, 0")
    e(f"s_cbranch_scc1 {none}")
    e(f"s_ff1_i32_b32 s{S_T}, s{S_MASK}")
    e(f"s_bitset0_b32 s{S_MASK}, s{S_T}")
    e(f"v_readlane_b32 s{S_T+1}, v{vp}, s{S_T}")
    e(f"s_lshl_b32 s{S_J16[slot]}, s{S_T}, 6")
    e(f"s_add_u32 s{S_J16[slot]}, s{S_J16[slot]}, s{S_W16}")
    e("s_nop 1")
    e(f"s_lshl_b32 s{S_T+1}, s{S_T+1}, 16")
    e(f"s_add_u32 s{S_SOFF[slot]}, s{S_T+1}, s{S_KVH512}")
    if isA and os.environ.get("NOALOAD"):
        e(f"s_cmp_eq_u32 s{S_CGA}, 0")
        e(f"s_cbranch_scc0 {none}")
    e(f"s_branch {go}")
    e(f"{none}:")
    e(f"s_mov_b32 s{S_SOFF[slot]}, {KV_BYTES}")
    e(f"{go}:")
    for s in range(8):
        r = V_K[slot] + 4 * s
        e(f"buffer_load_dwordx4 v[{r}:{r+3}], v{V_OFFK}, s[{S_K}:{S_K+3}], s{S_SOFF[slot]} offen offset:{s*64}{nt}")


def issue_v(slot, isA):
    nt = NTA if isA else NTB
    e(f"s_add_u32 s{S_VO+1}, s{S_SOFF[slot]}, 0x1000")
    e(f"s_add_u32 s{S_VO+2}, s{S_SOFF[slot]}, 0x2000")
    e(f"s_add_u32 s{S_VO+3}, s{S_SOFF[slot]}, 0x3000")
    for i in range(4):
        so = S_SOFF[slot] if i == 0 else S_VO + i
        for half in range(2):
            r = V_V[slot] + (i * 2 + half) * 4
            e(f"buffer_load_dwordx4 v[{r}:{r+3}], v{V_OFFV}, s[{S_V}:{S_V+3}], s{so} offen offset:{half*256}{nt}")


def issue_poll():
    e(f"v_mov_b32 v{V_T1}, 0")
    e(f"buffer_load_dword v{V_SC}, v{V_T1}, s[{S_DBG}:{S_DBG+3}], s{S_POLL} offen sc1")


def tile(slot, isA):
    K, V = V_K[slot], V_V[slot]
    if not isA:
        np_ = lab("nopoll")
        e(f"s_cmp_lg_u32 s{S_N}, 1")
        e(f"s_cbranch_scc1 {np_}")
        issue_poll()
        e(f"{np_}:")
    e("s_waitcnt vmcnt(24)")
    for s in range(8):
        c = "0" if s == 0 else f"v[{V_S}:{V_S+3}]"
        e(f"v_mfma_f32_16x16x32_bf16 v[{V_S}:{V_S+3}], v[{K+4*s}:{K+4*s+3}], v[{V_Q+4*s}:{V_Q+4*s+3}], {c}")
    e(f"v_subrev_u32 v{V_T0}, s{S_J16[slot]}, v{V_CTX}")
    issue_k(slot, isA)
    sc = f"v{V_SC}" if isA else f"s{S_SCB}"
    e(f"v_mov_b32 v{V_T1}, {NEG_MASK:#x}")
    e(f"v_cmp_lt_i32 vcc, 0, v{V_T0}")
    e(f"v_mul_f32 v{V_S}, {sc}, v{V_S}")
    e(f"v_mul_f32 v{V_S+1}, {sc}, v{V_S+1}")
    e(f"v_cndmask_b32 v{V_S}, v{V_T1}, v{V_S}, vcc")
    e(f"v_cmp_lt_i32 vcc, 1, v{V_T0}")
    e(f"v_mul_f32 v{V_S+2}, {sc}, v{V_S+2}")
    e(f"v_mul_f32 v{V_S+3}, {sc}, v{V_S+3}")
    e(f"v_cndmask_b32 v{V_S+1}, v{V_T1}, v{V_S+1}, vcc")
    e(f"v_cmp_lt_i32 vcc, 2, v{V_T0}")
    e("s_nop 1")
    e(f"v_cndmask_b32 v{V_S+2}, v{V_T1}, v{V_S+2}, vcc")
    e(f"v_cmp_lt_i32 vcc, 3, v{V_T0}")
    e("s_nop 1")
    e(f"v_cndmask_b32 v{V_S+3}, v{V_T1}, v{V_S+3}, vcc")
    e(f"v_max3_f32 v{V_T0}, v{V_S}, v{V_S+1}, v{V_S+2}")
    e(f"v_max_f32 v{V_T0}, v{V_T0}, v{V_S+3}")
    e(f"v_mov_b32 v{V_T1}, v{V_T0}")
    e("s_nop 1")
    e(f"v_permlane16_swap_b32 v{V_T0}, v{V_T1}")
    e(f"v_max_f32 v{V_T0}, v{V_T0}, v{V_T1}")
    e(f"v_mov_b32 v{V_T1}, v{V_T0}")
    e("s_nop 1")
    e(f"v_permlane32_swap_b32 v{V_T0}, v{V_T1}")
    e(f"v_max3_f32 v{V_T0}, v{V_T0}, v{V_T1}, v{V_M}")
    e(f"v_sub_f32 v{V_T1}, v{V_M}, v{V_T0}")
    e(f"v_exp_f32 v{V_T1}, v{V_T1}")
    e(f"v_mov_b32 v{V_M}, v{V_T0}")
    for r in range(4):
        e(f"v_sub_f32 v{V_S+r}, v{V_S+r}, v{V_T0}")
    for r in range(4):
        e(f"v_exp_f32 v{V_S+r}, v{V_S+r}")
    e(f"v_cmp_neq_f32 vcc, 1.0, v{V_T1}")
    e(f"v_add_f32 v{V_T0}, v{V_S}, v{V_S+1}")
    e(f"v_add_f32 v{V_T0}, v{V_T0}, v{V_S+2}")
    e(f"v_add_f32 v{V_T0}, v{V_T0}, v{V_S+3}")
    e(f"v_fma_f32 v{V_L}, v{V_L}, v{V_T1}, v{V_T0}")
    e(f"v_cvt_pk_bf16_f32 v{V_P}, v{V_S}, v{V_S+1}")
    e(f"v_cvt_pk_bf16_f32 v{V_P+1}, v{V_S+2}, v{V_S+3}")
    skip = lab("nors")
    e(f"s_cbranch_vccz {skip}")
    for r in range(64):
        e(f"v_mul_f32 v{V_ACC+r}, v{V_T1}, v{V_ACC+r}")
    e(f"{skip}:")
    e("s_waitcnt vmcnt(24)")
    n = 0
    pend = []
    for half in range(2):
        for d in range(4):
            t = V_VT + (n % 4) * 4
            n += 1
            T = [V + (i * 2 + half) * 4 + d for i in range(4)]
            e(f"v_perm_b32 v{t}, v{T[1]}, v{T[0]}, s{S_SELLO}")
            e(f"v_perm_b32 v{t+1}, v{T[3]}, v{T[2]}, s{S_SELLO}")
            e(f"v_perm_b32 v{t+2}, v{T[1]}, v{T[0]}, s{S_SELHI}")
            e(f"v_perm_b32 v{t+3}, v{T[3]}, v{T[2]}, s{S_SELHI}")
            for m in pend:
                e(m)
            a0 = V_ACC + (half * 8 + 2 * d) * 4
            a1 = a0 + 4
            pend = [
                f"v_mfma_f32_16x16x16_bf16 v[{a0}:{a0+3}], v[{t}:{t+1}], v[{V_P}:{V_P+1}], v[{a0}:{a0+3}]",
                f"v_mfma_f32_16x16x16_bf16 v[{a1}:{a1+3}], v[{t+2}:{t+3}], v[{V_P}:{V_P+1}], v[{a1}:{a1+3}]",
            ]
    issue_v(slot, isA)
    for m in pend:
        e(m)


def main_loop(isA):
    top, done = lab("loop"), lab("ldone")
    e(f"{top}:")
    tile(0, isA)
    e(f"s_sub_u32 s{S_N}, s{S_N}, 1")
    e(f"s_cmp_eq_u32 s{S_N}, 0")
    e(f"s_cbranch_scc1 {done}")
    tile(1, isA)
    e(f"s_sub_u32 s{S_N}, s{S_N}, 1")
    e(f"s_cmp_lg_u32 s{S_N}, 0")
    e(f"s_cbranch_scc1 {top}")
    e(f"{done}:")


def init_acc():
    for r in range(64):
        e(f"v_mov_b32 v{V_ACC+r}, 0")
    e(f"v_mov_b32 v{V_M}, {M_INIT:#x}")
    e(f"v_mov_b32 v{V_L}, 0")


def group_masks(base_rows, base_row0, act, nact):
    for c in range(4):
        for i in range(4):
            e(f"v_cmp_eq_u32 s[{S_C+2*i}:{S_C+2*i+1}], v{base_rows+4*i+c}, v{base_row0+c}")
        e(f"s_and_b64 s[{S_C}:{S_C+1}], s[{S_C}:{S_C+1}], s[{S_C+2}:{S_C+3}]")
        e(f"s_and_b64 s[{S_C+4}:{S_C+5}], s[{S_C+4}:{S_C+5}], s[{S_C+6}:{S_C+7}]")
        e(f"s_and_b64 s[{S_C}:{S_C+1}], s[{S_C}:{S_C+1}], s[{S_C+4}:{S_C+5}]")
        e(f"s_and_b32 s{S_M+c}, s{S_C}, s{S_C+1}")
    e(f"s_or_b32 s{S_T}, s{S_M}, s{S_M+1}")
    e(f"s_or_b32 s{S_T}, s{S_T}, s{S_M+2}")
    e(f"s_or_b32 s{S_T}, s{S_T}, s{S_M+3}")
    e(f"s_mov_b32 s{act}, 0")
    for c in range(NCH):
        e(f"s_and_b32 s{S_T+1}, s{S_T}, {0xf << (4*c):#x}")
        e(f"s_cselect_b32 s{S_T+1}, {1 << c}, 0")
        e(f"s_or_b32 s{act}, s{act}, s{S_T+1}")
    e(f"s_bcnt1_i32_b32 s{nact}, s{act}")
    e(f"s_mov_b32 s{S_MASK}, s{S_M}")
    for c in range(1, 4):
        e(f"s_cmp_eq_u32 s{S_W}, {c}")
        e(f"s_cselect_b32 s{S_MASK}, s{S_M+c}, s{S_MASK}")


def merge_part1():
    e(f"v_mov_b32 v{V_T1}, v{V_L}")
    e("s_nop 1")
    e(f"v_permlane16_swap_b32 v{V_L}, v{V_T1}")
    e(f"v_add_f32 v{V_L}, v{V_L}, v{V_T1}")
    e(f"v_mov_b32 v{V_T1}, v{V_L}")
    e("s_nop 1")
    e(f"v_permlane32_swap_b32 v{V_L}, v{V_T1}")
    e(f"v_add_f32 v{V_L}, v{V_L}, v{V_T1}")
    lane_into(15)
    e("v_and_b32 v8, 15, v15")
    e("v_lshrrev_b32 v9, 4, v15")
    e("v_lshlrev_b32 v10, 2, v8")
    e(f"s_lshl_b32 s{S_T}, s{S_W}, 7")
    e(f"v_add_u32 v11, s{S_T}, v10")
    e(f"ds_write_b32 v11, v{V_M} offset:{LDS_ML}")
    e(f"ds_write_b32 v11, v{V_L} offset:{LDS_ML+64}")
    e("s_waitcnt lgkmcnt(0)")
    e("s_barrier")
    for w in range(4):
        e(f"ds_read_b32 v{16+w}, v10 offset:{LDS_ML+128*w}")
        e(f"ds_read_b32 v{20+w}, v10 offset:{LDS_ML+128*w+64}")
    e("s_waitcnt lgkmcnt(0)")
    e("v_max3_f32 v12, v16, v17, v18")
    e("v_max_f32 v12, v12, v19")
    for w in range(4):
        e(f"v_sub_f32 v{16+w}, v{16+w}, v12")
    e(f"v_sub_f32 v13, v{V_M}, v12")
    for w in range(4):
        e(f"v_exp_f32 v{16+w}, v{16+w}")
    e("v_exp_f32 v13, v13")
    e("v_mul_f32 v14, v16, v20")
    e("v_fma_f32 v14, v17, v21, v14")
    e("v_fma_f32 v14, v18, v22, v14")
    e("v_fma_f32 v14, v19, v23, v14")


def merge_part2(only2):
    e(f"ds_write_b32 v10, v12 offset:{LDS_FML}")
    e(f"ds_write_b32 v10, v14 offset:{LDS_FML+64}")
    if only2:
        e("v_cmp_gt_u32 vcc, 2, v8")
        e(f"s_and_saveexec_b64 s[{S_C}:{S_C+1}], vcc")
    for r in range(64):
        e(f"v_mul_f32 v{V_ACC+r}, v13, v{V_ACC+r}")
    e(f"s_mul_i32 s{S_T}, s{S_W}, {WSTR}")
    e(f"v_mul_u32_u24 v11, {CSTR}, v8")
    e("v_lshl_add_u32 v11, v9, 4, v11")
    e(f"v_add_u32 v11, s{S_T}, v11")
    for a in range(16):
        e(f"ds_write_b128 v11, v[{V_ACC+4*a}:{V_ACC+4*a+3}] offset:{LDS_O+a*64}")
    if only2:
        e(f"s_mov_b64 exec, s[{S_C}:{S_C+1}]")


def final_thread_map():
    e("v_mov_b32 v25, 0")
    e("v_and_b32 v24, 15, v15")
    e("v_lshrrev_b32 v26, 4, v15")
    e(f"s_and_b32 s{S_T}, s{S_W}, 1")
    e(f"s_lshl_b32 s{S_T+1}, s{S_T}, 9")
    e("v_lshlrev_b32 v27, 7, v26")
    e("v_lshl_add_u32 v24, v24, 2, v27")
    e(f"v_add_u32 v24, s{S_T+1}, v24")
    e("v_and_b32 v27, 3, v15")
    e("v_lshlrev_b32 v27, 4, v27")
    e("v_lshl_add_u32 v27, v26, 2, v27")
    e("v_bfe_u32 v26, v15, 2, 2")
    e("v_lshl_add_u32 v26, v26, 6, v27")
    e(f"s_lshl_b32 s{S_T+1}, s{S_T}, 8")
    e(f"v_add_u32 v26, s{S_T+1}, v26")


def issue_partial_loads(act):
    e(f"s_and_b32 s{S_T2}, s{S_FB}, 7")
    e(f"s_lshl_b32 s{S_T2}, s{S_T2}, 1")
    e(f"s_add_u32 s{S_T2}, s{S_T2}, s{S_COL2}")
    e(f"s_lshl_b32 s{S_T2+1}, s{S_KVH}, 2")
    e(f"s_add_u32 s{S_T2+1}, s{S_T2+1}, s{S_FGRP}")
    e(f"s_lshl_b32 s{S_T2+1}, s{S_T2+1}, 18")
    e(f"s_lshl_b32 s{S_T2+2}, s{S_T2}, 10")
    e(f"s_add_u32 s{S_T2+2}, s{S_T2+2}, s{S_T2+1}")
    e(f"s_lshl_b32 s{S_T2+3}, s{S_T2}, 2")
    e(f"s_add_u32 s{S_T2+3}, s{S_T2+3}, s{S_T2+1}")
    e(f"s_add_u32 s{S_T2+3}, s{S_T2+3}, 0x4000")
    for c in range(NCH):
        r = 32 + 4 * c
        ina, nxt = lab("ina"), lab("nxt")
        e(f"s_bitcmp1_b32 s{act}, {c}")
        e(f"s_cbranch_scc0 {ina}")
        e(f"buffer_load_dword v{r}, v24, s[{S_WS}:{S_WS+3}], s{S_T2+2} offen sc1")
        e(f"buffer_load_dword v{r+1}, v24, s[{S_WS}:{S_WS+3}], s{S_T2+2} offen offset:64 sc1")
        e(f"buffer_load_dword v{r+2}, v25, s[{S_WS}:{S_WS+3}], s{S_T2+3} offen sc1")
        e(f"buffer_load_dword v{r+3}, v25, s[{S_WS}:{S_WS+3}], s{S_T2+3} offen offset:64 sc1")
        e(f"s_branch {nxt}")
        e(f"{ina}:")
        e(f"v_mov_b32 v{r}, 0")
        e(f"v_mov_b32 v{r+1}, 0")
        e(f"v_mov_b32 v{r+2}, {M_INIT:#x}")
        e(f"v_mov_b32 v{r+3}, 0")
        e(f"{nxt}:")
        if c < NCH - 1:
            e(f"s_add_u32 s{S_T2+2}, s{S_T2+2}, {SLOT}")
            e(f"s_add_u32 s{S_T2+3}, s{S_T2+3}, {SLOT}")


def final_combine():
    e("s_waitcnt vmcnt(0)")
    e("v_max3_f32 v27, v22, v34, v38")
    e("v_max3_f32 v27, v27, v42, v46")
    e("v_max3_f32 v27, v27, v50, v54")
    e("v_max3_f32 v27, v27, v58, v62")
    e("v_sub_f32 v22, v22, v27")
    for c in range(NCH):
        e(f"v_sub_f32 v{34+4*c}, v{34+4*c}, v27")
    e("v_exp_f32 v22, v22")
    for c in range(NCH):
        e(f"v_exp_f32 v{34+4*c}, v{34+4*c}")
    e("s_nop 0")
    e("v_mul_f32 v20, v20, v22")
    e("v_mul_f32 v21, v21, v22")
    e("v_mul_f32 v23, v23, v22")
    for c in range(NCH):
        e(f"v_fma_f32 v20, v{32+4*c}, v{34+4*c}, v20")
        e(f"v_fma_f32 v21, v{33+4*c}, v{34+4*c}, v21")
        e(f"v_fma_f32 v23, v{35+4*c}, v{34+4*c}, v23")
    e("v_rcp_f32 v23, v23")
    e("s_nop 0")
    e("v_mul_f32 v20, v20, v23")
    e("v_mul_f32 v21, v21, v23")
    e("v_cvt_pk_bf16_f32 v20, v20, v21")
    e(f"s_lshl_b32 s{S_T2}, s{S_FB}, 4")
    e(f"s_lshl_b32 s{S_T2+1}, s{S_KVH}, 1")
    e(f"s_add_u32 s{S_T2}, s{S_T2}, s{S_T2+1}")
    e(f"s_add_u32 s{S_T2}, s{S_T2}, s{S_COL2}")
    e(f"s_lshl_b32 s{S_T2}, s{S_T2}, 9")
    e(f"buffer_store_dword v20, v26, s[{S_OUT}:{S_OUT+3}], s{S_T2} offen")


def b_prefetch():
    lane_into(16)
    e("v_and_b32 v17, 1, v16")
    e("v_lshrrev_b32 v18, 4, v16")
    e("v_lshlrev_b32 v17, 9, v17")
    e("v_lshl_add_u32 v17, v18, 4, v17")
    e(f"s_lshl_b32 s{S_T}, s{S_B}, 13")
    e(f"s_lshl_b32 s{S_T+1}, s{S_KVH}, 10")
    e(f"s_add_u32 s{S_T}, s{S_T}, s{S_T+1}")
    for s in range(8):
        e(f"buffer_load_dwordx4 v[{V_Q+4*s}:{V_Q+4*s+3}], v17, s[{S_Q}:{S_Q+3}], s{S_T} offen offset:{s*64}")
    e("v_lshlrev_b32 v18, 2, v18")
    e(f"v_sub_u32 v{V_CTX}, s{S_CTXB}, v18")
    e(f"s_mov_b32 s{S_MASK}, s{S_MASKB}")
    issue_k(0, False)
    issue_v(0, False)
    issue_k(1, False)
    issue_v(1, False)


def gen():
    hdr = open(OUT + ".ref").read().split("; Override launch geometry")[0]
    L.append(hdr.rstrip())
    L.append("; Override launch geometry by editing the next line (default: block=256,")
    L.append(f"; @launch grid=({NWG},1,1) block=(256,1,1) lds={LDS_BYTES}")
    L.append('.amdgcn_target "amdgcn-amd-amdhsa--gfx950"')
    L.append(".text")
    L.append(f".globl {NAME}")
    L.append(".p2align 8")
    L.append(f".type {NAME},@function")
    L.append(f"{NAME}:")
    e(f"s_cmp_ge_u32 s2, {NWG}")
    e("s_cbranch_scc1 L_end")
    e("s_load_dwordx16 s[4:19], s[0:1], 0")
    e("v_lshrrev_b32 v1, 6, v0")
    e("v_and_b32 v15, 63, v0")
    e(f"v_readfirstlane_b32 s{S_W}, v1")
    if os.environ.get("MAP1"):
        e(f"s_lshr_b32 s{S_KVH}, s2, 5")
        e(f"s_and_b32 s{S_B}, s2, 31")
    else:
        e(f"s_and_b32 s{S_KVH}, s2, 7")
        e(f"s_lshr_b32 s{S_B}, s2, 3")
    e(f"s_lshr_b32 s{S_GRP}, s{S_B}, 3")
    e(f"s_lshl_b32 s{S_KVH512}, s{S_KVH}, 9")
    e(f"s_mov_b32 s{S_SELLO}, 0x05040100")
    e(f"s_mov_b32 s{S_SELHI}, 0x07060302")
    e(f"s_lshl_b32 s{S_W16}, s{S_W}, 4")
    e(f"s_lshr_b32 s{S_COL2}, s{S_W}, 1")
    e(f"s_lshl_b32 s{S_POLL}, s{S_B}, 3")
    e(f"s_add_u32 s{S_POLL}, s{S_POLL}, s{S_KVH}")
    e(f"s_and_b32 s{S_POLL}, s{S_POLL}, 0xfc")
    e("v_and_b32 v8, 15, v15")
    e("v_lshrrev_b32 v9, 4, v15")
    e(f"v_lshlrev_b32 v{V_OFFK}, 12, v8")
    e(f"v_lshl_add_u32 v{V_OFFK}, v9, 4, v{V_OFFK}")
    e(f"v_lshlrev_b32 v{V_OFFV}, 14, v9")
    e(f"v_lshl_add_u32 v{V_OFFV}, v8, 4, v{V_OFFV}")
    e("v_lshlrev_b32 v12, 2, v15")
    e("v_and_b32 v13, 31, v15")
    e("v_lshrrev_b32 v14, 5, v15")
    e("v_lshlrev_b32 v13, 4, v13")
    e("v_lshl_add_u32 v14, v14, 9, v13")
    e(f"s_lshl_b32 s{S_T}, s{S_GRP}, 12")
    e(f"s_lshl_b32 s{S_VO}, s{S_B}, 9")
    e(f"s_lshl_b32 s{S_VO+1}, s{S_W}, 2")
    e(f"s_add_u32 s{S_VO}, s{S_VO}, s{S_VO+1}")
    e("s_waitcnt lgkmcnt(0)")
    srd(S_CTX, 12, 128)
    srd(S_BT, 10, 16384)
    e(f"buffer_load_dword v10, v12, s[{S_CTX}:{S_CTX+3}], 0 offen")
    e(f"buffer_load_dwordx4 v[144:147], v13, s[{S_BT}:{S_BT+3}], s{S_T} offen")
    for i in range(4):
        e(f"buffer_load_dwordx4 v[{128+4*i}:{131+4*i}], v14, s[{S_BT}:{S_BT+3}], s{S_T} offen offset:{i*1024}")
    e(f"buffer_load_dword v{V_PHYSB}, v13, s[{S_BT}:{S_BT+3}], s{S_VO} offen")
    srd(S_Q, 4, 262144)
    srd(S_K, 6, KV_BYTES)
    srd(S_V, 8, KV_BYTES)
    srd(S_OUT, 14, 262144)
    srd(S_DBG, 16, 256)
    srd(S_WS, 18, WS_BYTES)
    stamp(0)
    e("s_waitcnt vmcnt(7)" if STAMP else "s_waitcnt vmcnt(6)")
    e(f"v_readlane_b32 s{S_T2}, v10, s{S_B}")
    e(f"s_bfm_b32 s{S_T2+1}, s{S_B}, 0")
    e("s_nop 1")
    e(f"v_cmp_gt_i32 s[{S_C}:{S_C+1}], s{S_T2}, v10")
    e(f"v_cmp_eq_u32 s[{S_C+2}:{S_C+3}], s{S_T2}, v10")
    e(f"s_and_b32 s{S_C+2}, s{S_C+2}, s{S_T2+1}")
    e(f"s_or_b32 s{S_C}, s{S_C}, s{S_C+2}")
    e(f"s_bcnt1_i32_b32 s{S_T}, s{S_C}")
    e(f"s_lshr_b32 s{S_CHA}, s{S_T}, 2")
    e(f"s_and_b32 s{S_CGA}, s{S_T}, 3")
    e(f"s_min_i32 s{S_CTXB}, s{S_T2}, 0x800")
    e(f"s_cmp_gt_i32 s{S_T2}, 0")
    e(f"s_cselect_b32 s{S_CTXB}, s{S_CTXB}, 0x800")
    e(f"s_cselect_b32 s{S_SCB}, {SCALE:#x}, 0")
    e(f"s_lshl_b32 s{S_T}, s{S_CGA}, 12")
    e(f"s_lshl_b32 s{S_VO+1}, s{S_W}, 2")
    e(f"s_add_u32 s{S_VO}, s{S_T}, s{S_VO+1}")
    e(f"buffer_load_dwordx4 v[176:179], v13, s[{S_BT}:{S_BT+3}], s{S_T} offen")
    for i in range(4):
        e(f"buffer_load_dwordx4 v[{160+4*i}:{163+4*i}], v14, s[{S_BT}:{S_BT+3}], s{S_T} offen offset:{i*1024}")
    e(f"buffer_load_dword v{V_PHYSA}, v13, s[{S_BT}:{S_BT+3}], s{S_VO} offen")
    e("v_lshrrev_b32 v10, 1, v8")
    e("v_lshlrev_b32 v12, 2, v10")
    e(f"s_lshl_b32 s{S_T}, s{S_CGA}, 5")
    e(f"buffer_load_dword v{V_CTX}, v12, s[{S_CTX}:{S_CTX+3}], s{S_T} offen")
    e("v_lshlrev_b32 v11, 9, v8")
    e("v_and_b32 v12, 1, v8")
    e("v_lshlrev_b32 v11, 13, v10")
    e("v_lshl_add_u32 v11, v12, 9, v11")
    e("v_lshl_add_u32 v11, v9, 4, v11")
    e(f"s_lshl_b32 s{S_T}, s{S_CGA}, 16")
    e(f"s_lshl_b32 s{S_T+1}, s{S_KVH}, 10")
    e(f"s_add_u32 s{S_T}, s{S_T}, s{S_T+1}")
    for s in range(8):
        e(f"buffer_load_dwordx4 v[{V_Q+4*s}:{V_Q+4*s+3}], v11, s[{S_Q}:{S_Q+3}], s{S_T} offen offset:{s*64}")
    e("s_waitcnt vmcnt(15)")
    group_masks(128, 144, S_ACT, S_NACT)
    e(f"s_add_u32 s{S_T2}, s{S_CTXB}, 15")
    e(f"s_lshr_b32 s{S_T2}, s{S_T2}, 4")
    e(f"s_sub_u32 s{S_T2}, s{S_T2}, s{S_W}")
    e(f"s_add_u32 s{S_T2}, s{S_T2}, 3")
    e(f"s_lshr_b32 s{S_T2}, s{S_T2}, 2")
    e(f"s_bfm_b64 s[{S_T}:{S_T+1}], s{S_T2}, 0")
    e(f"s_andn2_b32 s{S_MASKB}, s{S_T}, s{S_MASK}")
    init_acc()
    e(f"s_mov_b32 s{S_LAST}, 0")
    e("s_waitcnt vmcnt(8)")
    group_masks(160, 176, S_ACTA, S_NACTA)
    e(f"s_lshr_b32 s{S_T}, s{S_ACTA}, s{S_CHA}")
    e(f"s_and_b32 s{S_T}, s{S_T}, 1")
    e("s_cbranch_scc0 L_noA")
    stamp(1)
    e(f"s_lshl_b32 s{S_T}, s{S_CHA}, 2")
    e(f"s_lshl_b32 s{S_T}, 0xf, s{S_T}")
    e(f"s_and_b32 s{S_MASK}, s{S_MASK}, s{S_T}")
    e(f"s_bcnt1_i32_b32 s{S_N}, s{S_MASK}")
    e(f"v_cmp_lt_i32 vcc, 0, v{V_CTX}")
    e(f"v_min_i32 v12, 0x800, v{V_CTX}")
    e("v_mov_b32 v13, 0x800")
    e("v_cndmask_b32 v12, v13, v12, vcc")
    e(f"v_mov_b32 v13, {SCALE:#x}")
    e(f"v_cndmask_b32 v{V_SC}, 0, v13, vcc")
    e("v_lshlrev_b32 v9, 2, v9")
    e(f"v_sub_u32 v{V_CTX}, v12, v9")
    e(f"s_cmp_eq_u32 s{S_N}, 0")
    e("s_cbranch_scc1 L_A_loopdone")
    issue_k(0, True)
    issue_v(0, True)
    issue_k(1, True)
    issue_v(1, True)
    main_loop(True)
    e("L_A_loopdone:")
    e("s_waitcnt vmcnt(0)")
    stamp(2)
    b_prefetch()
    merge_part1()
    merge_part2(False)
    e("s_waitcnt lgkmcnt(0)")
    e("s_barrier")
    e(f"s_lshl_b32 s{S_T}, s{S_W}, 10")
    e("v_lshlrev_b32 v11, 4, v15")
    e(f"s_mul_i32 s{S_T+1}, s{S_W}, {CSTR}")
    e(f"v_add_u32 v12, s{S_T+1}, v11")
    e(f"v_add_u32 v11, s{S_T}, v11")
    e(f"s_lshl_b32 s{S_T}, s{S_KVH}, 2")
    e(f"s_add_u32 s{S_T}, s{S_T}, s{S_CGA}")
    e(f"s_lshl_b32 s{S_T}, s{S_T}, 3")
    e(f"s_add_u32 s{S_T}, s{S_T}, s{S_CHA}")
    e(f"s_lshl_b32 s{S_T}, s{S_T}, 15")
    for q in range(4):
        for w in range(4):
            e(f"ds_read_b128 v[{64+16*q+4*w}:{67+16*q+4*w}], v12 offset:{LDS_O+w*WSTR+q*4*CSTR}")
    e("v_lshlrev_b32 v10, 2, v15")
    e(f"ds_read_b32 v28, v10 offset:{LDS_FML}")
    e("s_waitcnt lgkmcnt(0)")
    for q in range(4):
        b = 64 + 16 * q
        for k in range(4):
            e(f"v_add_f32 v{b+k}, v{b+k}, v{b+4+k}")
            e(f"v_add_f32 v{b+8+k}, v{b+8+k}, v{b+12+k}")
        for k in range(4):
            e(f"v_add_f32 v{b+k}, v{b+k}, v{b+8+k}")
        e(f"s_add_u32 s{S_T+1}, s{S_T}, {q*4096}")
        e(f"buffer_store_dwordx4 v[{b}:{b+3}], v11, s[{S_WS}:{S_WS+3}], s{S_T+1} offen sc1")
    e(f"s_add_u32 s{S_T+1}, s{S_T}, 0x4000")
    e(f"s_cmp_lg_u32 s{S_W}, 0")
    e("s_cbranch_scc1 L_A_noml")
    e("v_cmp_gt_u32 vcc, 32, v15")
    e(f"s_and_saveexec_b64 s[{S_C}:{S_C+1}], vcc")
    e(f"buffer_store_dword v28, v10, s[{S_WS}:{S_WS+3}], s{S_T+1} offen sc1")
    e(f"s_mov_b64 exec, s[{S_C}:{S_C+1}]")
    e("L_A_noml:")
    e("s_waitcnt vmcnt(0)")
    e("s_barrier")
    init_acc()
    e(f"s_cmp_lg_u32 s{S_W}, 0")
    e("s_cbranch_scc1 L_B_start")
    lane_into(15)
    e(f"s_and_b32 s{S_T2}, s{S_KVH}, 3")
    e(f"s_lshl_b32 s{S_T2}, s{S_T2}, 3")
    e(f"s_lshl_b32 s{S_T}, 1, s{S_T2}")
    e(f"v_mov_b32 v28, s{S_T}")
    e(f"s_and_b32 s{S_T}, s{S_KVH}, 4")
    e(f"s_lshl_b32 s{S_T+1}, s{S_CGA}, 6")
    e(f"s_add_u32 s{S_T}, s{S_T}, s{S_T+1}")
    e("v_lshlrev_b32 v10, 3, v15")
    e("v_cmp_gt_u32 vcc, 8, v15")
    e(f"s_and_saveexec_b64 s[{S_C}:{S_C+1}], vcc")
    e(f"buffer_atomic_add v28, v10, s[{S_DBG}:{S_DBG+3}], s{S_T} offen sc0 sc1")
    e("s_waitcnt vmcnt(0)")
    e(f"v_lshrrev_b32 v28, s{S_T2}, v28")
    e("v_and_b32 v28, 0xff, v28")
    e(f"v_cmp_eq_u32 vcc, s{S_NACTA}, v28")
    e(f"s_mov_b64 exec, s[{S_C}:{S_C+1}]")
    e(f"s_and_b32 s{S_LAST}, vcc_lo, 0xff")
    e("s_branch L_B_start")
    e("L_noA:")
    e("s_waitcnt vmcnt(0)")
    stamp(1)
    b_prefetch()
    e("L_B_start:")
    e(f"s_bcnt1_i32_b32 s{S_N}, s{S_MASKB}")
    e(f"s_cmp_lg_u32 s{S_N}, 0")
    e("s_cbranch_scc1 L_B_go")
    issue_poll()
    e("s_branch L_B_loopdone")
    e("L_B_go:")
    main_loop(False)
    e("L_B_loopdone:")
    e("s_waitcnt vmcnt(0)")
    stamp(3)
    e(f"s_mov_b32 s{S_FB}, s{S_B}")
    e(f"s_mov_b32 s{S_FGRP}, s{S_GRP}")
    e(f"s_mov_b32 s{S_FAST}, 1")
    lane_into(15)
    final_thread_map()
    e(f"s_cmp_eq_u32 s{S_NACT}, 0")
    e("s_cbranch_scc1 L_B_early")
    e(f"v_readfirstlane_b32 s{S_T}, v{V_SC}")
    e(f"s_and_b32 s{S_T2+2}, s{S_KVH}, 3")
    e(f"s_lshl_b32 s{S_T2+2}, s{S_T2+2}, 3")
    e(f"s_lshr_b32 s{S_T}, s{S_T}, s{S_T2+2}")
    e(f"s_and_b32 s{S_T}, s{S_T}, 0xff")
    e(f"s_cmp_eq_u32 s{S_T}, s{S_NACT}")
    e(f"s_cselect_b32 s{S_FAST}, 1, 0")
    e("s_cbranch_scc0 L_B_noearly")
    e("L_B_early:")
    issue_partial_loads(S_ACT)
    e("L_B_noearly:")
    merge_part1()
    merge_part2(True)
    e(f"v_mov_b32 v12, s{S_FAST}")
    e(f"s_lshl_b32 s{S_T}, s{S_W}, 2")
    e(f"v_mov_b32 v13, s{S_T}")
    e(f"ds_write_b32 v13, v12 offset:{LDS_FLAG}")
    e(f"s_cmp_lg_u32 s{S_W}, 0")
    e("s_cbranch_scc1 L_B_nolast")
    e(f"v_mov_b32 v12, s{S_LAST}")
    e(f"ds_write_b32 v25, v12 offset:{LDS_LAST}")
    e("L_B_nolast:")
    e("s_waitcnt lgkmcnt(0)")
    e("s_barrier")
    e(f"s_lshl_b32 s{S_T}, s{S_COL2}, 10")
    e(f"v_add_u32 v11, s{S_T}, v24")
    e(f"s_lshl_b32 s{S_T}, s{S_COL2}, 2")
    e(f"v_mov_b32 v10, s{S_T}")
    e(f"s_mul_i32 s{S_T}, s{S_COL2}, {CSTR}")
    e(f"v_add_u32 v76, s{S_T}, v24")
    for w in range(4):
        e(f"v_add_u32 v{72+w}, {LDS_O+WSTR*w}, v76")
    for w in range(4):
        e(f"ds_read2_b32 v[{64+2*w}:{65+2*w}], v{72+w} offset0:0 offset1:16")
    e(f"ds_read_b32 v22, v10 offset:{LDS_FML}")
    e(f"ds_read_b32 v23, v10 offset:{LDS_FML+64}")
    e(f"ds_read_b128 v[28:31], v25 offset:{LDS_FLAG}")
    e(f"ds_read_b32 v16, v25 offset:{LDS_LAST}")
    e("s_waitcnt lgkmcnt(0)")
    e("v_and_b32 v28, v28, v29")
    e("v_and_b32 v30, v30, v31")
    e("v_and_b32 v28, v28, v30")
    e("v_add_f32 v20, v64, v66")
    e(f"v_readfirstlane_b32 s{S_FAST}, v28")
    e(f"v_readfirstlane_b32 s{S_LAST}, v16")
    e("v_add_f32 v21, v65, v67")
    e("v_add_f32 v20, v20, v68")
    e("v_add_f32 v21, v21, v69")
    e("v_add_f32 v20, v20, v70")
    e("v_add_f32 v21, v21, v71")
    e(f"s_cmp_eq_u32 s{S_FAST}, 1")
    e("s_cbranch_scc1 L_B_final")
    e(f"s_lshl_b32 s{S_T}, s{S_B}, 3")
    e(f"s_add_u32 s{S_T}, s{S_T}, s{S_KVH}")
    e(f"s_lshl_b32 s{S_T}, s{S_T}, 12")
    e(f"s_add_u32 s{S_T}, s{S_T}, {BSLOT_BASE}")
    e(f"buffer_store_dword v20, v11, s[{S_WS}:{S_WS+3}], s{S_T} offen sc1")
    e(f"buffer_store_dword v21, v11, s[{S_WS}:{S_WS+3}], s{S_T} offen offset:64 sc1")
    e(f"buffer_store_dword v22, v10, s[{S_WS}:{S_WS+3}], s{S_T} offen offset:2048 sc1")
    e(f"buffer_store_dword v23, v10, s[{S_WS}:{S_WS+3}], s{S_T} offen offset:2112 sc1")
    e("s_waitcnt vmcnt(0)")
    e("s_barrier")
    e(f"s_cmp_lg_u32 s{S_W}, 0")
    e("s_cbranch_scc1 L_B_noatom")
    e(f"s_lshl_b32 s{S_T2}, s{S_B}, 3")
    e(f"s_add_u32 s{S_T2}, s{S_T2}, s{S_KVH}")
    e(f"s_and_b32 s{S_T2+1}, s{S_T2}, 0xfc")
    e(f"s_and_b32 s{S_T2+2}, s{S_T2}, 3")
    e(f"s_lshl_b32 s{S_T2+2}, s{S_T2+2}, 3")
    e(f"s_lshl_b32 s{S_T}, 1, s{S_T2+2}")
    e(f"v_mov_b32 v28, s{S_T}")
    e("v_cmp_eq_u32 vcc, 0, v15")
    e(f"s_and_saveexec_b64 s[{S_C}:{S_C+1}], vcc")
    e(f"buffer_atomic_add v28, v25, s[{S_DBG}:{S_DBG+3}], s{S_T2+1} offen sc0 sc1")
    e("s_waitcnt vmcnt(0)")
    e(f"v_lshrrev_b32 v28, s{S_T2+2}, v28")
    e("v_and_b32 v28, 0xff, v28")
    e(f"ds_write_b32 v25, v28 offset:{LDS_VERD}")
    e(f"s_mov_b64 exec, s[{S_C}:{S_C+1}]")
    e("L_B_noatom:")
    e("s_waitcnt lgkmcnt(0)")
    e("s_barrier")
    e(f"ds_read_b32 v28, v25 offset:{LDS_VERD}")
    e("s_waitcnt lgkmcnt(0)")
    e(f"v_readfirstlane_b32 s{S_T}, v28")
    e("s_nop 1")
    e(f"s_cmp_lg_u32 s{S_T}, s{S_NACT}")
    e("s_cbranch_scc1 L_lastloop")
    issue_partial_loads(S_ACT)
    e("L_B_final:")
    final_combine()
    stamp(4)
    e("L_lastloop:")
    e(f"s_cmp_eq_u32 s{S_LAST}, 0")
    e("s_cbranch_scc1 L_end")
    e(f"s_ff1_i32_b32 s{S_T}, s{S_LAST}")
    e(f"s_bitset0_b32 s{S_LAST}, s{S_T}")
    e(f"s_lshl_b32 s{S_FB}, s{S_CGA}, 3")
    e(f"s_add_u32 s{S_FB}, s{S_FB}, s{S_T}")
    e(f"s_mov_b32 s{S_FGRP}, s{S_CGA}")
    e(f"s_lshl_b32 s{S_T}, s{S_FB}, 3")
    e(f"s_add_u32 s{S_T}, s{S_T}, s{S_KVH}")
    e(f"s_lshl_b32 s{S_T}, s{S_T}, 12")
    e(f"s_add_u32 s{S_T}, s{S_T}, {BSLOT_BASE}")
    e(f"s_lshl_b32 s{S_T+1}, s{S_COL2}, 10")
    e(f"v_add_u32 v11, s{S_T+1}, v24")
    e(f"s_lshl_b32 s{S_T+1}, s{S_COL2}, 2")
    e(f"v_mov_b32 v10, s{S_T+1}")
    e("s_waitcnt vmcnt(0)")
    e(f"buffer_load_dword v20, v11, s[{S_WS}:{S_WS+3}], s{S_T} offen sc1")
    e(f"buffer_load_dword v21, v11, s[{S_WS}:{S_WS+3}], s{S_T} offen offset:64 sc1")
    e(f"buffer_load_dword v22, v10, s[{S_WS}:{S_WS+3}], s{S_T} offen offset:2048 sc1")
    e(f"buffer_load_dword v23, v10, s[{S_WS}:{S_WS+3}], s{S_T} offen offset:2112 sc1")
    issue_partial_loads(S_ACTA)
    final_combine()
    e("s_branch L_lastloop")
    e("L_end:")
    e("s_endpgm")
    L.append('.section .rodata,"a"')
    L.append(".p2align 6")
    L.append(f".amdhsa_kernel {NAME}")
    L.append("  .amdhsa_next_free_vgpr 256")
    L.append(f"  .amdhsa_next_free_sgpr {NSGPR}")
    L.append("  .amdhsa_accum_offset 256")
    L.append("  .amdhsa_group_segment_fixed_size 0")
    L.append("  .amdhsa_kernarg_size 64")
    L.append("  .amdhsa_user_sgpr_count 2")
    L.append("  .amdhsa_user_sgpr_kernarg_segment_ptr 1")
    L.append("  .amdhsa_system_sgpr_workgroup_id_x 1")
    L.append(".end_amdhsa_kernel")
    open(OUT, "w").write("\n".join(L) + "\n")


gen()
```

```python
import os
import struct

NAME = "standalone__paged_block_table_kv_radixattention__sampling_kernel"
OUT = "standalone__paged_block_table_kv_radixattention__sampling.s"

KV_BYTES = 2112 * 65536
WS_BYTES = 553648128
NWG = 256
LDS_O = 1024
CSTR = 1040
WSTR = 16 * CSTR
LDS_ML = 0
LDS_FML = 512
LDS_FLAG = 640
LDS_VERD = 672
LDS_LAST = 676
LDS_BYTES = 84 * 1024
SLOT = 0x8000
BSLOT_BASE = 0x800000
NCH = 8

STAMP = int(os.environ.get("STAMP", "0"))
THR = int(os.environ.get("THR", "0"))
NTA = os.environ.get("NTA", "")
NTB = os.environ.get("NTB", " nt")


def f2u(x):
    return struct.unpack("<I", struct.pack("<f", x))[0]


SCALE = f2u(0.0625 * 1.4426950408889634)
NEG_MASK = f2u(-3.0e38)
M_INIT = f2u(-1.0e30)

L = []


def e(s=""):
    L.append("    " + s if s and not s.endswith(":") else s)


V_PHYSB = 0
V_OFFK = 1
V_OFFV = 2
V_PHYSA = 3
V_CTX = 4
V_M = 5
V_L = 6
V_SC = 7
V_S = 8
V_T0 = 12
V_T1 = 13
V_P = 14
V_VT = 16
V_Q = 32
V_ACC = 64
V_K = [128, 192]
V_V = [160, 224]
S_K, S_V, S_Q, S_BT, S_CTX, S_OUT, S_DBG, S_WS = 20, 24, 28, 32, 36, 40, 44, 48
S_W, S_KVH, S_B, S_GRP, S_CHA, S_CGA = 52, 53, 54, 55, 56, 57
S_M = 58
S_MASK, S_N = 62, 63
S_SOFF = [64, 65]
S_J16 = [66, 67]
S_T = 68
S_SELLO, S_SELHI = 70, 71
S_VO = 72
S_KVH512 = 76
S_ACT = 77
S_C = 78
S_NACT = 86
S_W16 = 87
S_COL2 = 88
S_FAST = 89
S_LAST = 90
S_FB = 91
S_T2 = 92
S_MASKB = 96
S_CTXB = 97
S_SCB = 98
S_ACTA = 99
S_NACTA = 100
S_POLL = 3
S_FGRP = 101
NSGPR = 102


def stamp(k):
    if not STAMP:
        return
    e("s_memrealtime s[94:95]")
    e("s_waitcnt lgkmcnt(0)")
    e("s_lshl_b32 s93, s2, 2")
    e(f"s_add_u32 s93, s93, s{S_W}")
    e("s_lshl_b32 s93, s93, 6")
    e(f"s_add_u32 s93, s93, {0x1000000 + k*8}")
    e("v_mov_b32 v16, s94")
    e("v_mov_b32 v17, s95")
    e("v_mov_b32 v18, 0")
    e(f"buffer_store_dwordx2 v[16:17], v18, s[{S_WS}:{S_WS+3}], s93 offen")


def srd(dst, lo, nbytes):
    e(f"s_mov_b32 s{dst}, s{lo}")
    e(f"s_and_b32 s{dst+1}, s{lo+1}, 0xffff")
    e(f"s_mov_b32 s{dst+2}, {nbytes}")
    e(f"s_mov_b32 s{dst+3}, 0x00020000")


uid = [0]


def lab(p):
    uid[0] += 1
    return f"L_{p}_{uid[0]}"


def lane_into(v):
    e(f"v_mbcnt_lo_u32_b32 v{v}, -1, 0")
    e(f"v_mbcnt_hi_u32_b32 v{v}, -1, v{v}")


def issue_k(slot, isA):
    none, go = lab("none"), lab("go")
    nt = NTA if isA else NTB
    vp = V_PHYSA if isA else V_PHYSB
    e(f"s_cmp_eq_u32 s{S_MASK}, 0")
    e(f"s_cbranch_scc1 {none}")
    e(f"s_ff1_i32_b32 s{S_T}, s{S_MASK}")
    e(f"s_bitset0_b32 s{S_MASK}, s{S_T}")
    e(f"v_readlane_b32 s{S_T+1}, v{vp}, s{S_T}")
    e(f"s_lshl_b32 s{S_J16[slot]}, s{S_T}, 6")
    e(f"s_add_u32 s{S_J16[slot]}, s{S_J16[slot]}, s{S_W16}")
    e("s_nop 1")
    e(f"s_lshl_b32 s{S_T+1}, s{S_T+1}, 16")
    e(f"s_add_u32 s{S_SOFF[slot]}, s{S_T+1}, s{S_KVH512}")
    if isA and os.environ.get("NOALOAD"):
        e(f"s_cmp_eq_u32 s{S_CGA}, 0")
        e(f"s_cbranch_scc0 {none}")
    e(f"s_branch {go}")
    e(f"{none}:")
    e(f"s_mov_b32 s{S_SOFF[slot]}, {KV_BYTES}")
    e(f"{go}:")
    for s in range(8):
        r = V_K[slot] + 4 * s
        e(f"buffer_load_dwordx4 v[{r}:{r+3}], v{V_OFFK}, s[{S_K}:{S_K+3}], s{S_SOFF[slot]} offen offset:{s*64}{nt}")


def issue_v(slot, isA):
    nt = NTA if isA else NTB
    e(f"s_add_u32 s{S_VO+1}, s{S_SOFF[slot]}, 0x1000")
    e(f"s_add_u32 s{S_VO+2}, s{S_SOFF[slot]}, 0x2000")
    e(f"s_add_u32 s{S_VO+3}, s{S_SOFF[slot]}, 0x3000")
    for i in range(4):
        so = S_SOFF[slot] if i == 0 else S_VO + i
        for half in range(2):
            r = V_V[slot] + (i * 2 + half) * 4
            e(f"buffer_load_dwordx4 v[{r}:{r+3}], v{V_OFFV}, s[{S_V}:{S_V+3}], s{so} offen offset:{half*256}{nt}")


def issue_poll():
    e(f"v_mov_b32 v{V_T1}, 0")
    e(f"buffer_load_dword v{V_SC}, v{V_T1}, s[{S_DBG}:{S_DBG+3}], s{S_POLL} offen sc1")


def tile(slot, isA):
    K, V = V_K[slot], V_V[slot]
    if not isA:
        np_ = lab("nopoll")
        e(f"s_cmp_lg_u32 s{S_N}, 1")
        e(f"s_cbranch_scc1 {np_}")
        issue_poll()
        e(f"{np_}:")
        if THR:
            nt_ = lab("nothr")
            e(f"s_cmp_eq_u32 s{S_FAST}, 0")
            e(f"s_cbranch_scc1 {nt_}")
            e(f"s_waitcnt vmcnt({THR})")
            e(f"{nt_}:")
    e("s_waitcnt vmcnt(24)")
    for s in range(8):
        c = "0" if s == 0 else f"v[{V_S}:{V_S+3}]"
        e(f"v_mfma_f32_16x16x32_bf16 v[{V_S}:{V_S+3}], v[{K+4*s}:{K+4*s+3}], v[{V_Q+4*s}:{V_Q+4*s+3}], {c}")
    e(f"v_subrev_u32 v{V_T0}, s{S_J16[slot]}, v{V_CTX}")
    issue_k(slot, isA)
    sc = f"v{V_SC}" if isA else f"s{S_SCB}"
    e(f"v_mov_b32 v{V_T1}, {NEG_MASK:#x}")
    e(f"v_cmp_lt_i32 vcc, 0, v{V_T0}")
    e(f"v_mul_f32 v{V_S}, {sc}, v{V_S}")
    e(f"v_mul_f32 v{V_S+1}, {sc}, v{V_S+1}")
    e(f"v_cndmask_b32 v{V_S}, v{V_T1}, v{V_S}, vcc")
    e(f"v_cmp_lt_i32 vcc, 1, v{V_T0}")
    e(f"v_mul_f32 v{V_S+2}, {sc}, v{V_S+2}")
    e(f"v_mul_f32 v{V_S+3}, {sc}, v{V_S+3}")
    e(f"v_cndmask_b32 v{V_S+1}, v{V_T1}, v{V_S+1}, vcc")
    e(f"v_cmp_lt_i32 vcc, 2, v{V_T0}")
    e("s_nop 1")
    e(f"v_cndmask_b32 v{V_S+2}, v{V_T1}, v{V_S+2}, vcc")
    e(f"v_cmp_lt_i32 vcc, 3, v{V_T0}")
    e("s_nop 1")
    e(f"v_cndmask_b32 v{V_S+3}, v{V_T1}, v{V_S+3}, vcc")
    e(f"v_max3_f32 v{V_T0}, v{V_S}, v{V_S+1}, v{V_S+2}")
    e(f"v_max_f32 v{V_T0}, v{V_T0}, v{V_S+3}")
    e(f"v_mov_b32 v{V_T1}, v{V_T0}")
    e("s_nop 1")
    e(f"v_permlane16_swap_b32 v{V_T0}, v{V_T1}")
    e(f"v_max_f32 v{V_T0}, v{V_T0}, v{V_T1}")
    e(f"v_mov_b32 v{V_T1}, v{V_T0}")
    e("s_nop 1")
    e(f"v_permlane32_swap_b32 v{V_T0}, v{V_T1}")
    e(f"v_max3_f32 v{V_T0}, v{V_T0}, v{V_T1}, v{V_M}")
    e(f"v_sub_f32 v{V_T1}, v{V_M}, v{V_T0}")
    e(f"v_exp_f32 v{V_T1}, v{V_T1}")
    e(f"v_mov_b32 v{V_M}, v{V_T0}")
    for r in range(4):
        e(f"v_sub_f32 v{V_S+r}, v{V_S+r}, v{V_T0}")
    for r in range(4):
        e(f"v_exp_f32 v{V_S+r}, v{V_S+r}")
    e(f"v_cmp_neq_f32 vcc, 1.0, v{V_T1}")
    e(f"v_add_f32 v{V_T0}, v{V_S}, v{V_S+1}")
    e(f"v_add_f32 v{V_T0}, v{V_T0}, v{V_S+2}")
    e(f"v_add_f32 v{V_T0}, v{V_T0}, v{V_S+3}")
    e(f"v_fma_f32 v{V_L}, v{V_L}, v{V_T1}, v{V_T0}")
    e(f"v_cvt_pk_bf16_f32 v{V_P}, v{V_S}, v{V_S+1}")
    e(f"v_cvt_pk_bf16_f32 v{V_P+1}, v{V_S+2}, v{V_S+3}")
    skip = lab("nors")
    e(f"s_cbranch_vccz {skip}")
    for r in range(64):
        e(f"v_mul_f32 v{V_ACC+r}, v{V_T1}, v{V_ACC+r}")
    e(f"{skip}:")
    e("s_waitcnt vmcnt(24)")
    n = 0
    pend = []
    for half in range(2):
        for d in range(4):
            t = V_VT + (n % 4) * 4
            n += 1
            T = [V + (i * 2 + half) * 4 + d for i in range(4)]
            e(f"v_perm_b32 v{t}, v{T[1]}, v{T[0]}, s{S_SELLO}")
            e(f"v_perm_b32 v{t+1}, v{T[3]}, v{T[2]}, s{S_SELLO}")
            e(f"v_perm_b32 v{t+2}, v{T[1]}, v{T[0]}, s{S_SELHI}")
            e(f"v_perm_b32 v{t+3}, v{T[3]}, v{T[2]}, s{S_SELHI}")
            for m in pend:
                e(m)
            a0 = V_ACC + (half * 8 + 2 * d) * 4
            a1 = a0 + 4
            pend = [
                f"v_mfma_f32_16x16x16_bf16 v[{a0}:{a0+3}], v[{t}:{t+1}], v[{V_P}:{V_P+1}], v[{a0}:{a0+3}]",
                f"v_mfma_f32_16x16x16_bf16 v[{a1}:{a1+3}], v[{t+2}:{t+3}], v[{V_P}:{V_P+1}], v[{a1}:{a1+3}]",
            ]
    issue_v(slot, isA)
    for m in pend:
        e(m)


def main_loop(isA):
    top, done = lab("loop"), lab("ldone")
    e(f"{top}:")
    tile(0, isA)
    e(f"s_sub_u32 s{S_N}, s{S_N}, 1")
    e(f"s_cmp_eq_u32 s{S_N}, 0")
    e(f"s_cbranch_scc1 {done}")
    tile(1, isA)
    e(f"s_sub_u32 s{S_N}, s{S_N}, 1")
    e(f"s_cmp_lg_u32 s{S_N}, 0")
    e(f"s_cbranch_scc1 {top}")
    e(f"{done}:")


def init_acc():
    for r in range(64):
        e(f"v_mov_b32 v{V_ACC+r}, 0")
    e(f"v_mov_b32 v{V_M}, {M_INIT:#x}")
    e(f"v_mov_b32 v{V_L}, 0")


def group_masks(base_rows, base_row0, act, nact):
    for c in range(4):
        for i in range(4):
            e(f"v_cmp_eq_u32 s[{S_C+2*i}:{S_C+2*i+1}], v{base_rows+4*i+c}, v{base_row0+c}")
        e(f"s_and_b64 s[{S_C}:{S_C+1}], s[{S_C}:{S_C+1}], s[{S_C+2}:{S_C+3}]")
        e(f"s_and_b64 s[{S_C+4}:{S_C+5}], s[{S_C+4}:{S_C+5}], s[{S_C+6}:{S_C+7}]")
        e(f"s_and_b64 s[{S_C}:{S_C+1}], s[{S_C}:{S_C+1}], s[{S_C+4}:{S_C+5}]")
        e(f"s_and_b32 s{S_M+c}, s{S_C}, s{S_C+1}")
    e(f"s_or_b32 s{S_T}, s{S_M}, s{S_M+1}")
    e(f"s_or_b32 s{S_T}, s{S_T}, s{S_M+2}")
    e(f"s_or_b32 s{S_T}, s{S_T}, s{S_M+3}")
    e(f"s_mov_b32 s{act}, 0")
    for c in range(NCH):
        e(f"s_and_b32 s{S_T+1}, s{S_T}, {0xf << (4*c):#x}")
        e(f"s_cselect_b32 s{S_T+1}, {1 << c}, 0")
        e(f"s_or_b32 s{act}, s{act}, s{S_T+1}")
    e(f"s_bcnt1_i32_b32 s{nact}, s{act}")
    e(f"s_mov_b32 s{S_MASK}, s{S_M}")
    for c in range(1, 4):
        e(f"s_cmp_eq_u32 s{S_W}, {c}")
        e(f"s_cselect_b32 s{S_MASK}, s{S_M+c}, s{S_MASK}")


def merge_part1():
    e(f"v_mov_b32 v{V_T1}, v{V_L}")
    e("s_nop 1")
    e(f"v_permlane16_swap_b32 v{V_L}, v{V_T1}")
    e(f"v_add_f32 v{V_L}, v{V_L}, v{V_T1}")
    e(f"v_mov_b32 v{V_T1}, v{V_L}")
    e("s_nop 1")
    e(f"v_permlane32_swap_b32 v{V_L}, v{V_T1}")
    e(f"v_add_f32 v{V_L}, v{V_L}, v{V_T1}")
    lane_into(15)
    e("v_and_b32 v8, 15, v15")
    e("v_lshrrev_b32 v9, 4, v15")
    e("v_lshlrev_b32 v10, 2, v8")
    e(f"s_lshl_b32 s{S_T}, s{S_W}, 7")
    e(f"v_add_u32 v11, s{S_T}, v10")
    e(f"ds_write_b32 v11, v{V_M} offset:{LDS_ML}")
    e(f"ds_write_b32 v11, v{V_L} offset:{LDS_ML+64}")
    e("s_waitcnt lgkmcnt(0)")
    e("s_barrier")
    for w in range(4):
        e(f"ds_read_b32 v{16+w}, v10 offset:{LDS_ML+128*w}")
        e(f"ds_read_b32 v{20+w}, v10 offset:{LDS_ML+128*w+64}")
    e("s_waitcnt lgkmcnt(0)")
    e("v_max3_f32 v12, v16, v17, v18")
    e("v_max_f32 v12, v12, v19")
    for w in range(4):
        e(f"v_sub_f32 v{16+w}, v{16+w}, v12")
    e(f"v_sub_f32 v13, v{V_M}, v12")
    for w in range(4):
        e(f"v_exp_f32 v{16+w}, v{16+w}")
    e("v_exp_f32 v13, v13")
    e("v_mul_f32 v14, v16, v20")
    e("v_fma_f32 v14, v17, v21, v14")
    e("v_fma_f32 v14, v18, v22, v14")
    e("v_fma_f32 v14, v19, v23, v14")


def merge_part2(only2):
    e(f"ds_write_b32 v10, v12 offset:{LDS_FML}")
    e(f"ds_write_b32 v10, v14 offset:{LDS_FML+64}")
    if only2:
        e("v_cmp_gt_u32 vcc, 2, v8")
        e(f"s_and_saveexec_b64 s[{S_C}:{S_C+1}], vcc")
    for r in range(64):
        e(f"v_mul_f32 v{V_ACC+r}, v13, v{V_ACC+r}")
    e(f"s_mul_i32 s{S_T}, s{S_W}, {WSTR}")
    e(f"v_mul_u32_u24 v11, {CSTR}, v8")
    e("v_lshl_add_u32 v11, v9, 4, v11")
    e(f"v_add_u32 v11, s{S_T}, v11")
    for a in range(16):
        e(f"ds_write_b128 v11, v[{V_ACC+4*a}:{V_ACC+4*a+3}] offset:{LDS_O+a*64}")
    if only2:
        e(f"s_mov_b64 exec, s[{S_C}:{S_C+1}]")


def final_thread_map():
    e("v_mov_b32 v25, 0")
    e("v_and_b32 v24, 15, v15")
    e("v_lshrrev_b32 v26, 4, v15")
    e(f"s_and_b32 s{S_T}, s{S_W}, 1")
    e(f"s_lshl_b32 s{S_T+1}, s{S_T}, 9")
    e("v_lshlrev_b32 v27, 7, v26")
    e("v_lshl_add_u32 v24, v24, 2, v27")
    e(f"v_add_u32 v24, s{S_T+1}, v24")
    e("v_and_b32 v27, 3, v15")
    e("v_lshlrev_b32 v27, 4, v27")
    e("v_lshl_add_u32 v27, v26, 2, v27")
    e("v_bfe_u32 v26, v15, 2, 2")
    e("v_lshl_add_u32 v26, v26, 6, v27")
    e(f"s_lshl_b32 s{S_T+1}, s{S_T}, 8")
    e(f"v_add_u32 v26, s{S_T+1}, v26")


def issue_partial_loads(act):
    e(f"s_and_b32 s{S_T2}, s{S_FB}, 7")
    e(f"s_lshl_b32 s{S_T2}, s{S_T2}, 1")
    e(f"s_add_u32 s{S_T2}, s{S_T2}, s{S_COL2}")
    e(f"s_lshl_b32 s{S_T2+1}, s{S_KVH}, 2")
    e(f"s_add_u32 s{S_T2+1}, s{S_T2+1}, s{S_FGRP}")
    e(f"s_lshl_b32 s{S_T2+1}, s{S_T2+1}, 18")
    e(f"s_lshl_b32 s{S_T2+2}, s{S_T2}, 10")
    e(f"s_add_u32 s{S_T2+2}, s{S_T2+2}, s{S_T2+1}")
    e(f"s_lshl_b32 s{S_T2+3}, s{S_T2}, 2")
    e(f"s_add_u32 s{S_T2+3}, s{S_T2+3}, s{S_T2+1}")
    e(f"s_add_u32 s{S_T2+3}, s{S_T2+3}, 0x4000")
    for c in range(NCH):
        r = 32 + 4 * c
        ina, nxt = lab("ina"), lab("nxt")
        e(f"s_bitcmp1_b32 s{act}, {c}")
        e(f"s_cbranch_scc0 {ina}")
        e(f"buffer_load_dword v{r}, v24, s[{S_WS}:{S_WS+3}], s{S_T2+2} offen sc1")
        e(f"buffer_load_dword v{r+1}, v24, s[{S_WS}:{S_WS+3}], s{S_T2+2} offen offset:64 sc1")
        e(f"buffer_load_dword v{r+2}, v25, s[{S_WS}:{S_WS+3}], s{S_T2+3} offen sc1")
        e(f"buffer_load_dword v{r+3}, v25, s[{S_WS}:{S_WS+3}], s{S_T2+3} offen offset:64 sc1")
        e(f"s_branch {nxt}")
        e(f"{ina}:")
        e(f"v_mov_b32 v{r}, 0")
        e(f"v_mov_b32 v{r+1}, 0")
        e(f"v_mov_b32 v{r+2}, {M_INIT:#x}")
        e(f"v_mov_b32 v{r+3}, 0")
        e(f"{nxt}:")
        if c < NCH - 1:
            e(f"s_add_u32 s{S_T2+2}, s{S_T2+2}, {SLOT}")
            e(f"s_add_u32 s{S_T2+3}, s{S_T2+3}, {SLOT}")


def final_combine():
    e("s_waitcnt vmcnt(0)")
    e("v_max3_f32 v27, v22, v34, v38")
    e("v_max3_f32 v27, v27, v42, v46")
    e("v_max3_f32 v27, v27, v50, v54")
    e("v_max3_f32 v27, v27, v58, v62")
    e("v_sub_f32 v22, v22, v27")
    for c in range(NCH):
        e(f"v_sub_f32 v{34+4*c}, v{34+4*c}, v27")
    e("v_exp_f32 v22, v22")
    for c in range(NCH):
        e(f"v_exp_f32 v{34+4*c}, v{34+4*c}")
    e("s_nop 0")
    e("v_mul_f32 v20, v20, v22")
    e("v_mul_f32 v21, v21, v22")
    e("v_mul_f32 v23, v23, v22")
    for c in range(NCH):
        e(f"v_fma_f32 v20, v{32+4*c}, v{34+4*c}, v20")
        e(f"v_fma_f32 v21, v{33+4*c}, v{34+4*c}, v21")
        e(f"v_fma_f32 v23, v{35+4*c}, v{34+4*c}, v23")
    e("v_rcp_f32 v23, v23")
    e("s_nop 0")
    e("v_mul_f32 v20, v20, v23")
    e("v_mul_f32 v21, v21, v23")
    e("v_cvt_pk_bf16_f32 v20, v20, v21")
    e(f"s_lshl_b32 s{S_T2}, s{S_FB}, 4")
    e(f"s_lshl_b32 s{S_T2+1}, s{S_KVH}, 1")
    e(f"s_add_u32 s{S_T2}, s{S_T2}, s{S_T2+1}")
    e(f"s_add_u32 s{S_T2}, s{S_T2}, s{S_COL2}")
    e(f"s_lshl_b32 s{S_T2}, s{S_T2}, 9")
    e(f"buffer_store_dword v20, v26, s[{S_OUT}:{S_OUT+3}], s{S_T2} offen")


def b_prefetch():
    lane_into(16)
    e("v_and_b32 v17, 1, v16")
    e("v_lshrrev_b32 v18, 4, v16")
    e("v_lshlrev_b32 v17, 9, v17")
    e("v_lshl_add_u32 v17, v18, 4, v17")
    e(f"s_lshl_b32 s{S_T}, s{S_B}, 13")
    e(f"s_lshl_b32 s{S_T+1}, s{S_KVH}, 10")
    e(f"s_add_u32 s{S_T}, s{S_T}, s{S_T+1}")
    for s in range(8):
        e(f"buffer_load_dwordx4 v[{V_Q+4*s}:{V_Q+4*s+3}], v17, s[{S_Q}:{S_Q+3}], s{S_T} offen offset:{s*64}")
    e("v_lshlrev_b32 v18, 2, v18")
    e(f"v_sub_u32 v{V_CTX}, s{S_CTXB}, v18")
    e(f"s_mov_b32 s{S_MASK}, s{S_MASKB}")
    issue_k(0, False)
    issue_v(0, False)
    issue_k(1, False)
    issue_v(1, False)


def gen():
    hdr = open(OUT + ".ref").read().split("; Override launch geometry")[0]
    L.append(hdr.rstrip())
    L.append("; Override launch geometry by editing the next line (default: block=256,")
    L.append(f"; @launch grid=({NWG},1,1) block=(256,1,1) lds={LDS_BYTES}")
    L.append('.amdgcn_target "amdgcn-amd-amdhsa--gfx950"')
    L.append(".text")
    L.append(f".globl {NAME}")
    L.append(".p2align 8")
    L.append(f".type {NAME},@function")
    L.append(f"{NAME}:")
    e(f"s_cmp_ge_u32 s2, {NWG}")
    e("s_cbranch_scc1 L_end")
    e("s_load_dwordx16 s[4:19], s[0:1], 0")
    e("v_lshrrev_b32 v1, 6, v0")
    e("v_and_b32 v15, 63, v0")
    e(f"v_readfirstlane_b32 s{S_W}, v1")
    if os.environ.get("MAP1"):
        e(f"s_lshr_b32 s{S_KVH}, s2, 5")
        e(f"s_and_b32 s{S_B}, s2, 31")
    else:
        e(f"s_and_b32 s{S_KVH}, s2, 7")
        e(f"s_lshr_b32 s{S_B}, s2, 3")
    e(f"s_lshr_b32 s{S_GRP}, s{S_B}, 3")
    e(f"s_lshl_b32 s{S_KVH512}, s{S_KVH}, 9")
    e(f"s_mov_b32 s{S_SELLO}, 0x05040100")
    e(f"s_mov_b32 s{S_SELHI}, 0x07060302")
    e(f"s_lshl_b32 s{S_W16}, s{S_W}, 4")
    e(f"s_lshr_b32 s{S_COL2}, s{S_W}, 1")
    e(f"s_lshl_b32 s{S_POLL}, s{S_B}, 3")
    e(f"s_add_u32 s{S_POLL}, s{S_POLL}, s{S_KVH}")
    e(f"s_and_b32 s{S_POLL}, s{S_POLL}, 0xfc")
    e("v_and_b32 v8, 15, v15")
    e("v_lshrrev_b32 v9, 4, v15")
    e(f"v_lshlrev_b32 v{V_OFFK}, 12, v8")
    e(f"v_lshl_add_u32 v{V_OFFK}, v9, 4, v{V_OFFK}")
    e(f"v_lshlrev_b32 v{V_OFFV}, 14, v9")
    e(f"v_lshl_add_u32 v{V_OFFV}, v8, 4, v{V_OFFV}")
    e("v_lshlrev_b32 v12, 2, v15")
    e("v_and_b32 v13, 31, v15")
    e("v_lshrrev_b32 v14, 5, v15")
    e("v_lshlrev_b32 v13, 4, v13")
    e("v_lshl_add_u32 v14, v14, 9, v13")
    e(f"s_lshl_b32 s{S_T}, s{S_GRP}, 12")
    e(f"s_lshl_b32 s{S_VO}, s{S_B}, 9")
    e(f"s_lshl_b32 s{S_VO+1}, s{S_W}, 2")
    e(f"s_add_u32 s{S_VO}, s{S_VO}, s{S_VO+1}")
    e("s_waitcnt lgkmcnt(0)")
    srd(S_CTX, 12, 128)
    srd(S_BT, 10, 16384)
    e(f"buffer_load_dword v10, v12, s[{S_CTX}:{S_CTX+3}], 0 offen")
    e(f"buffer_load_dwordx4 v[144:147], v13, s[{S_BT}:{S_BT+3}], s{S_T} offen")
    for i in range(4):
        e(f"buffer_load_dwordx4 v[{128+4*i}:{131+4*i}], v14, s[{S_BT}:{S_BT+3}], s{S_T} offen offset:{i*1024}")
    e(f"buffer_load_dword v{V_PHYSB}, v13, s[{S_BT}:{S_BT+3}], s{S_VO} offen")
    srd(S_Q, 4, 262144)
    srd(S_K, 6, KV_BYTES)
    srd(S_V, 8, KV_BYTES)
    srd(S_OUT, 14, 262144)
    srd(S_DBG, 16, 256)
    srd(S_WS, 18, WS_BYTES)
    stamp(0)
    e("s_waitcnt vmcnt(7)" if STAMP else "s_waitcnt vmcnt(6)")
    e(f"v_readlane_b32 s{S_T2}, v10, s{S_B}")
    e(f"s_bfm_b32 s{S_T2+1}, s{S_B}, 0")
    e("s_nop 1")
    e(f"v_cmp_gt_i32 s[{S_C}:{S_C+1}], s{S_T2}, v10")
    e(f"v_cmp_eq_u32 s[{S_C+2}:{S_C+3}], s{S_T2}, v10")
    e(f"s_and_b32 s{S_C+2}, s{S_C+2}, s{S_T2+1}")
    e(f"s_or_b32 s{S_C}, s{S_C}, s{S_C+2}")
    e(f"s_bcnt1_i32_b32 s{S_T}, s{S_C}")
    e(f"s_lshr_b32 s{S_CHA}, s{S_T}, 2")
    e(f"s_and_b32 s{S_CGA}, s{S_T}, 3")
    e(f"s_and_b32 s{S_FAST}, s{S_T}, 8")
    e(f"s_xor_b32 s{S_FAST}, s{S_FAST}, 8")
    e(f"s_min_i32 s{S_CTXB}, s{S_T2}, 0x800")
    e(f"s_cmp_gt_i32 s{S_T2}, 0")
    e(f"s_cselect_b32 s{S_CTXB}, s{S_CTXB}, 0x800")
    e(f"s_cselect_b32 s{S_SCB}, {SCALE:#x}, 0")
    e(f"s_lshl_b32 s{S_T}, s{S_CGA}, 12")
    e(f"s_lshl_b32 s{S_VO+1}, s{S_W}, 2")
    e(f"s_add_u32 s{S_VO}, s{S_T}, s{S_VO+1}")
    e(f"buffer_load_dwordx4 v[176:179], v13, s[{S_BT}:{S_BT+3}], s{S_T} offen")
    for i in range(4):
        e(f"buffer_load_dwordx4 v[{160+4*i}:{163+4*i}], v14, s[{S_BT}:{S_BT+3}], s{S_T} offen offset:{i*1024}")
    e(f"buffer_load_dword v{V_PHYSA}, v13, s[{S_BT}:{S_BT+3}], s{S_VO} offen")
    e("v_lshrrev_b32 v10, 1, v8")
    e("v_lshlrev_b32 v12, 2, v10")
    e(f"s_lshl_b32 s{S_T}, s{S_CGA}, 5")
    e(f"buffer_load_dword v{V_CTX}, v12, s[{S_CTX}:{S_CTX+3}], s{S_T} offen")
    e("v_lshlrev_b32 v11, 9, v8")
    e("v_and_b32 v12, 1, v8")
    e("v_lshlrev_b32 v11, 13, v10")
    e("v_lshl_add_u32 v11, v12, 9, v11")
    e("v_lshl_add_u32 v11, v9, 4, v11")
    e(f"s_lshl_b32 s{S_T}, s{S_CGA}, 16")
    e(f"s_lshl_b32 s{S_T+1}, s{S_KVH}, 10")
    e(f"s_add_u32 s{S_T}, s{S_T}, s{S_T+1}")
    for s in range(8):
        e(f"buffer_load_dwordx4 v[{V_Q+4*s}:{V_Q+4*s+3}], v11, s[{S_Q}:{S_Q+3}], s{S_T} offen offset:{s*64}")
    e("s_waitcnt vmcnt(15)")
    group_masks(128, 144, S_ACT, S_NACT)
    e(f"s_add_u32 s{S_T2}, s{S_CTXB}, 15")
    e(f"s_lshr_b32 s{S_T2}, s{S_T2}, 4")
    e(f"s_sub_u32 s{S_T2}, s{S_T2}, s{S_W}")
    e(f"s_add_u32 s{S_T2}, s{S_T2}, 3")
    e(f"s_lshr_b32 s{S_T2}, s{S_T2}, 2")
    e(f"s_bfm_b64 s[{S_T}:{S_T+1}], s{S_T2}, 0")
    e(f"s_andn2_b32 s{S_MASKB}, s{S_T}, s{S_MASK}")
    init_acc()
    e(f"s_mov_b32 s{S_LAST}, 0")
    e("s_waitcnt vmcnt(8)")
    group_masks(160, 176, S_ACTA, S_NACTA)
    e(f"s_lshr_b32 s{S_T}, s{S_ACTA}, s{S_CHA}")
    e(f"s_and_b32 s{S_T}, s{S_T}, 1")
    e("s_cbranch_scc0 L_noA")
    stamp(1)
    e(f"s_lshl_b32 s{S_T}, s{S_CHA}, 2")
    e(f"s_lshl_b32 s{S_T}, 0xf, s{S_T}")
    e(f"s_and_b32 s{S_MASK}, s{S_MASK}, s{S_T}")
    e(f"s_bcnt1_i32_b32 s{S_N}, s{S_MASK}")
    e(f"v_cmp_lt_i32 vcc, 0, v{V_CTX}")
    e(f"v_min_i32 v12, 0x800, v{V_CTX}")
    e("v_mov_b32 v13, 0x800")
    e("v_cndmask_b32 v12, v13, v12, vcc")
    e(f"v_mov_b32 v13, {SCALE:#x}")
    e(f"v_cndmask_b32 v{V_SC}, 0, v13, vcc")
    e("v_lshlrev_b32 v9, 2, v9")
    e(f"v_sub_u32 v{V_CTX}, v12, v9")
    e(f"s_cmp_eq_u32 s{S_N}, 0")
    e("s_cbranch_scc1 L_A_loopdone")
    issue_k(0, True)
    issue_v(0, True)
    issue_k(1, True)
    issue_v(1, True)
    main_loop(True)
    e("L_A_loopdone:")
    e("s_waitcnt vmcnt(0)")
    stamp(2)
    b_prefetch()
    merge_part1()
    merge_part2(False)
    e("s_waitcnt lgkmcnt(0)")
    e("s_barrier")
    e(f"s_lshl_b32 s{S_T}, s{S_W}, 10")
    e("v_lshlrev_b32 v11, 4, v15")
    e(f"s_mul_i32 s{S_T+1}, s{S_W}, {CSTR}")
    e(f"v_add_u32 v12, s{S_T+1}, v11")
    e(f"v_add_u32 v11, s{S_T}, v11")
    e(f"s_lshl_b32 s{S_T}, s{S_KVH}, 2")
    e(f"s_add_u32 s{S_T}, s{S_T}, s{S_CGA}")
    e(f"s_lshl_b32 s{S_T}, s{S_T}, 3")
    e(f"s_add_u32 s{S_T}, s{S_T}, s{S_CHA}")
    e(f"s_lshl_b32 s{S_T}, s{S_T}, 15")
    for q in range(4):
        for w in range(4):
            e(f"ds_read_b128 v[{64+16*q+4*w}:{67+16*q+4*w}], v12 offset:{LDS_O+w*WSTR+q*4*CSTR}")
    e("v_lshlrev_b32 v10, 2, v15")
    e(f"ds_read_b32 v28, v10 offset:{LDS_FML}")
    e("s_waitcnt lgkmcnt(0)")
    for q in range(4):
        b = 64 + 16 * q
        for k in range(4):
            e(f"v_add_f32 v{b+k}, v{b+k}, v{b+4+k}")
            e(f"v_add_f32 v{b+8+k}, v{b+8+k}, v{b+12+k}")
        for k in range(4):
            e(f"v_add_f32 v{b+k}, v{b+k}, v{b+8+k}")
        e(f"s_add_u32 s{S_T+1}, s{S_T}, {q*4096}")
        e(f"buffer_store_dwordx4 v[{b}:{b+3}], v11, s[{S_WS}:{S_WS+3}], s{S_T+1} offen sc1")
    e(f"s_add_u32 s{S_T+1}, s{S_T}, 0x4000")
    e(f"s_cmp_lg_u32 s{S_W}, 0")
    e("s_cbranch_scc1 L_A_noml")
    e("v_cmp_gt_u32 vcc, 32, v15")
    e(f"s_and_saveexec_b64 s[{S_C}:{S_C+1}], vcc")
    e(f"buffer_store_dword v28, v10, s[{S_WS}:{S_WS+3}], s{S_T+1} offen sc1")
    e(f"s_mov_b64 exec, s[{S_C}:{S_C+1}]")
    e("L_A_noml:")
    e("s_waitcnt vmcnt(0)")
    e("s_barrier")
    init_acc()
    e(f"s_cmp_lg_u32 s{S_W}, 0")
    e("s_cbranch_scc1 L_B_start")
    lane_into(15)
    e(f"s_and_b32 s{S_T2}, s{S_KVH}, 3")
    e(f"s_lshl_b32 s{S_T2}, s{S_T2}, 3")
    e(f"s_lshl_b32 s{S_T}, 1, s{S_T2}")
    e(f"v_mov_b32 v28, s{S_T}")
    e(f"s_and_b32 s{S_T}, s{S_KVH}, 4")
    e(f"s_lshl_b32 s{S_T+1}, s{S_CGA}, 6")
    e(f"s_add_u32 s{S_T}, s{S_T}, s{S_T+1}")
    e("v_lshlrev_b32 v10, 3, v15")
    e("v_cmp_gt_u32 vcc, 8, v15")
    e(f"s_and_saveexec_b64 s[{S_C}:{S_C+1}], vcc")
    e(f"buffer_atomic_add v28, v10, s[{S_DBG}:{S_DBG+3}], s{S_T} offen sc0 sc1")
    e("s_waitcnt vmcnt(0)")
    e(f"v_lshrrev_b32 v28, s{S_T2}, v28")
    e("v_and_b32 v28, 0xff, v28")
    e(f"v_cmp_eq_u32 vcc, s{S_NACTA}, v28")
    e(f"s_mov_b64 exec, s[{S_C}:{S_C+1}]")
    e(f"s_and_b32 s{S_LAST}, vcc_lo, 0xff")
    e("s_branch L_B_start")
    e("L_noA:")
    stamp(1)
    b_prefetch()
    e("L_B_start:")
    e(f"s_bcnt1_i32_b32 s{S_N}, s{S_MASKB}")
    e(f"s_cmp_lg_u32 s{S_N}, 0")
    e("s_cbranch_scc1 L_B_go")
    issue_poll()
    e("s_branch L_B_loopdone")
    e("L_B_go:")
    main_loop(False)
    e("L_B_loopdone:")
    e("s_waitcnt vmcnt(0)")
    stamp(3)
    e(f"s_mov_b32 s{S_FB}, s{S_B}")
    e(f"s_mov_b32 s{S_FGRP}, s{S_GRP}")
    e(f"s_mov_b32 s{S_FAST}, 1")
    lane_into(15)
    final_thread_map()
    e(f"s_cmp_eq_u32 s{S_NACT}, 0")
    e("s_cbranch_scc1 L_B_early")
    e(f"v_readfirstlane_b32 s{S_T}, v{V_SC}")
    e(f"s_and_b32 s{S_T2+2}, s{S_KVH}, 3")
    e(f"s_lshl_b32 s{S_T2+2}, s{S_T2+2}, 3")
    e(f"s_lshr_b32 s{S_T}, s{S_T}, s{S_T2+2}")
    e(f"s_and_b32 s{S_T}, s{S_T}, 0xff")
    e(f"s_cmp_eq_u32 s{S_T}, s{S_NACT}")
    e(f"s_cselect_b32 s{S_FAST}, 1, 0")
    e("s_cbranch_scc0 L_B_noearly")
    e("L_B_early:")
    issue_partial_loads(S_ACT)
    e("L_B_noearly:")
    merge_part1()
    merge_part2(True)
    e(f"v_mov_b32 v12, s{S_FAST}")
    e(f"s_lshl_b32 s{S_T}, s{S_W}, 2")
    e(f"v_mov_b32 v13, s{S_T}")
    e(f"ds_write_b32 v13, v12 offset:{LDS_FLAG}")
    e(f"s_cmp_lg_u32 s{S_W}, 0")
    e("s_cbranch_scc1 L_B_nolast")
    e(f"v_mov_b32 v12, s{S_LAST}")
    e(f"ds_write_b32 v25, v12 offset:{LDS_LAST}")
    e("L_B_nolast:")
    e("s_waitcnt lgkmcnt(0)")
    e("s_barrier")
    e(f"s_lshl_b32 s{S_T}, s{S_COL2}, 10")
    e(f"v_add_u32 v11, s{S_T}, v24")
    e(f"s_lshl_b32 s{S_T}, s{S_COL2}, 2")
    e(f"v_mov_b32 v10, s{S_T}")
    e(f"s_mul_i32 s{S_T}, s{S_COL2}, {CSTR}")
    e(f"v_add_u32 v76, s{S_T}, v24")
    for w in range(4):
        e(f"v_add_u32 v{72+w}, {LDS_O+WSTR*w}, v76")
    for w in range(4):
        e(f"ds_read2_b32 v[{64+2*w}:{65+2*w}], v{72+w} offset0:0 offset1:16")
    e(f"ds_read_b32 v22, v10 offset:{LDS_FML}")
    e(f"ds_read_b32 v23, v10 offset:{LDS_FML+64}")
    e(f"ds_read_b128 v[28:31], v25 offset:{LDS_FLAG}")
    e(f"ds_read_b32 v16, v25 offset:{LDS_LAST}")
    e("s_waitcnt lgkmcnt(0)")
    e("v_and_b32 v28, v28, v29")
    e("v_and_b32 v30, v30, v31")
    e("v_and_b32 v28, v28, v30")
    e("v_add_f32 v20, v64, v66")
    e(f"v_readfirstlane_b32 s{S_FAST}, v28")
    e(f"v_readfirstlane_b32 s{S_LAST}, v16")
    e("v_add_f32 v21, v65, v67")
    e("v_add_f32 v20, v20, v68")
    e("v_add_f32 v21, v21, v69")
    e("v_add_f32 v20, v20, v70")
    e("v_add_f32 v21, v21, v71")
    e(f"s_cmp_eq_u32 s{S_FAST}, 1")
    e("s_cbranch_scc1 L_B_final")
    e(f"s_lshl_b32 s{S_T}, s{S_B}, 3")
    e(f"s_add_u32 s{S_T}, s{S_T}, s{S_KVH}")
    e(f"s_lshl_b32 s{S_T}, s{S_T}, 12")
    e(f"s_add_u32 s{S_T}, s{S_T}, {BSLOT_BASE}")
    e(f"buffer_store_dword v20, v11, s[{S_WS}:{S_WS+3}], s{S_T} offen sc1")
    e(f"buffer_store_dword v21, v11, s[{S_WS}:{S_WS+3}], s{S_T} offen offset:64 sc1")
    e(f"buffer_store_dword v22, v10, s[{S_WS}:{S_WS+3}], s{S_T} offen offset:2048 sc1")
    e(f"buffer_store_dword v23, v10, s[{S_WS}:{S_WS+3}], s{S_T} offen offset:2112 sc1")
    e("s_waitcnt vmcnt(0)")
    e("s_barrier")
    e(f"s_cmp_lg_u32 s{S_W}, 0")
    e("s_cbranch_scc1 L_B_noatom")
    e(f"s_lshl_b32 s{S_T2}, s{S_B}, 3")
    e(f"s_add_u32 s{S_T2}, s{S_T2}, s{S_KVH}")
    e(f"s_and_b32 s{S_T2+1}, s{S_T2}, 0xfc")
    e(f"s_and_b32 s{S_T2+2}, s{S_T2}, 3")
    e(f"s_lshl_b32 s{S_T2+2}, s{S_T2+2}, 3")
    e(f"s_lshl_b32 s{S_T}, 1, s{S_T2+2}")
    e(f"v_mov_b32 v28, s{S_T}")
    e("v_cmp_eq_u32 vcc, 0, v15")
    e(f"s_and_saveexec_b64 s[{S_C}:{S_C+1}], vcc")
    e(f"buffer_atomic_add v28, v25, s[{S_DBG}:{S_DBG+3}], s{S_T2+1} offen sc0 sc1")
    e("s_waitcnt vmcnt(0)")
    e(f"v_lshrrev_b32 v28, s{S_T2+2}, v28")
    e("v_and_b32 v28, 0xff, v28")
    e(f"ds_write_b32 v25, v28 offset:{LDS_VERD}")
    e(f"s_mov_b64 exec, s[{S_C}:{S_C+1}]")
    e("L_B_noatom:")
    e("s_waitcnt lgkmcnt(0)")
    e("s_barrier")
    e(f"ds_read_b32 v28, v25 offset:{LDS_VERD}")
    e("s_waitcnt lgkmcnt(0)")
    e(f"v_readfirstlane_b32 s{S_T}, v28")
    e("s_nop 1")
    e(f"s_cmp_lg_u32 s{S_T}, s{S_NACT}")
    e("s_cbranch_scc1 L_lastloop")
    issue_partial_loads(S_ACT)
    e("L_B_final:")
    final_combine()
    stamp(4)
    e("L_lastloop:")
    e(f"s_cmp_eq_u32 s{S_LAST}, 0")
    e("s_cbranch_scc1 L_end")
    e(f"s_ff1_i32_b32 s{S_T}, s{S_LAST}")
    e(f"s_bitset0_b32 s{S_LAST}, s{S_T}")
    e(f"s_lshl_b32 s{S_FB}, s{S_CGA}, 3")
    e(f"s_add_u32 s{S_FB}, s{S_FB}, s{S_T}")
    e(f"s_mov_b32 s{S_FGRP}, s{S_CGA}")
    e(f"s_lshl_b32 s{S_T}, s{S_FB}, 3")
    e(f"s_add_u32 s{S_T}, s{S_T}, s{S_KVH}")
    e(f"s_lshl_b32 s{S_T}, s{S_T}, 12")
    e(f"s_add_u32 s{S_T}, s{S_T}, {BSLOT_BASE}")
    e(f"s_lshl_b32 s{S_T+1}, s{S_COL2}, 10")
    e(f"v_add_u32 v11, s{S_T+1}, v24")
    e(f"s_lshl_b32 s{S_T+1}, s{S_COL2}, 2")
    e(f"v_mov_b32 v10, s{S_T+1}")
    e("s_waitcnt vmcnt(0)")
    e(f"buffer_load_dword v20, v11, s[{S_WS}:{S_WS+3}], s{S_T} offen sc1")
    e(f"buffer_load_dword v21, v11, s[{S_WS}:{S_WS+3}], s{S_T} offen offset:64 sc1")
    e(f"buffer_load_dword v22, v10, s[{S_WS}:{S_WS+3}], s{S_T} offen offset:2048 sc1")
    e(f"buffer_load_dword v23, v10, s[{S_WS}:{S_WS+3}], s{S_T} offen offset:2112 sc1")
    issue_partial_loads(S_ACTA)
    final_combine()
    e("s_branch L_lastloop")
    e("L_end:")
    e("s_endpgm")
    L.append('.section .rodata,"a"')
    L.append(".p2align 6")
    L.append(f".amdhsa_kernel {NAME}")
    L.append("  .amdhsa_next_free_vgpr 256")
    L.append(f"  .amdhsa_next_free_sgpr {NSGPR}")
    L.append("  .amdhsa_accum_offset 256")
    L.append("  .amdhsa_group_segment_fixed_size 0")
    L.append("  .amdhsa_kernarg_size 64")
    L.append("  .amdhsa_user_sgpr_count 2")
    L.append("  .amdhsa_user_sgpr_kernarg_segment_ptr 1")
    L.append("  .amdhsa_system_sgpr_workgroup_id_x 1")
    L.append(".end_amdhsa_kernel")
    open(OUT, "w").write("\n".join(L) + "\n")


gen()
```

```python
import os
import struct

NAME = "standalone__paged_block_table_kv_radixattention__sampling_kernel"
OUT = "standalone__paged_block_table_kv_radixattention__sampling.s"

KV_BYTES = 2112 * 65536
WS_BYTES = 553648128
NWG = 256
LDS_O = 1024
CSTR = 1040
WSTR = 16 * CSTR
LDS_ML = 0
LDS_FML = 512
LDS_FLAG = 640
LDS_VERD = 672
LDS_LAST = 676
LDS_BYTES = 84 * 1024
SLOT = 0x8000
BSLOT_BASE = 0x800000
NCH = 8

STAMP = int(os.environ.get("STAMP", "0"))
THR = int(os.environ.get("THR", "0"))
NTA = os.environ.get("NTA", "")
NTB = os.environ.get("NTB", " nt")


def f2u(x):
    return struct.unpack("<I", struct.pack("<f", x))[0]


SCALE = f2u(0.0625 * 1.4426950408889634)
NEG_MASK = f2u(-3.0e38)
M_INIT = f2u(-1.0e30)

L = []


def e(s=""):
    L.append("    " + s if s and not s.endswith(":") else s)


V_PHYSB = 0
V_OFFK = 1
V_OFFV = 2
V_PHYSA = 3
V_CTX = 4
V_M = 5
V_L = 6
V_SC = 7
V_S = 8
V_T0 = 12
V_T1 = 13
V_P = 14
V_VT = 16
V_Q = 32
V_ACC = 64
V_K = [128, 192]
V_V = [160, 224]
S_K, S_V, S_Q, S_BT, S_CTX, S_OUT, S_DBG, S_WS = 20, 24, 28, 32, 36, 40, 44, 48
S_W, S_KVH, S_B, S_GRP, S_CHA, S_CGA = 52, 53, 54, 55, 56, 57
S_M = 58
S_MASK, S_N = 62, 63
S_SOFF = [64, 65]
S_J16 = [66, 67]
S_T = 68
S_SELLO, S_SELHI = 70, 71
S_VO = 72
S_KVH512 = 76
S_ACT = 77
S_C = 78
S_NACT = 86
S_W16 = 87
S_COL2 = 88
S_FAST = 89
S_LAST = 90
S_FB = 91
S_T2 = 92
S_MASKB = 96
S_CTXB = 97
S_SCB = 98
S_ACTA = 99
S_NACTA = 100
S_POLL = 3
S_FGRP = 101
NSGPR = 102


def stamp(k):
    if not STAMP:
        return
    e("s_memrealtime s[94:95]")
    e("s_waitcnt lgkmcnt(0)")
    e("s_lshl_b32 s93, s2, 2")
    e(f"s_add_u32 s93, s93, s{S_W}")
    e("s_lshl_b32 s93, s93, 6")
    e(f"s_add_u32 s93, s93, {0x1000000 + k*8}")
    e("v_mov_b32 v16, s94")
    e("v_mov_b32 v17, s95")
    e("v_mov_b32 v18, 0")
    e(f"buffer_store_dwordx2 v[16:17], v18, s[{S_WS}:{S_WS+3}], s93 offen")


def srd(dst, lo, nbytes):
    e(f"s_mov_b32 s{dst}, s{lo}")
    e(f"s_and_b32 s{dst+1}, s{lo+1}, 0xffff")
    e(f"s_mov_b32 s{dst+2}, {nbytes}")
    e(f"s_mov_b32 s{dst+3}, 0x00020000")


uid = [0]


def lab(p):
    uid[0] += 1
    return f"L_{p}_{uid[0]}"


def lane_into(v):
    e(f"v_mbcnt_lo_u32_b32 v{v}, -1, 0")
    e(f"v_mbcnt_hi_u32_b32 v{v}, -1, v{v}")


def issue_k(slot, isA):
    none, go = lab("none"), lab("go")
    nt = NTA if isA else NTB
    vp = V_PHYSA if isA else V_PHYSB
    e(f"s_cmp_eq_u32 s{S_MASK}, 0")
    e(f"s_cbranch_scc1 {none}")
    e(f"s_ff1_i32_b32 s{S_T}, s{S_MASK}")
    e(f"s_bitset0_b32 s{S_MASK}, s{S_T}")
    e(f"v_readlane_b32 s{S_T+1}, v{vp}, s{S_T}")
    e(f"s_lshl_b32 s{S_J16[slot]}, s{S_T}, 6")
    e(f"s_add_u32 s{S_J16[slot]}, s{S_J16[slot]}, s{S_W16}")
    e("s_nop 1")
    e(f"s_lshl_b32 s{S_T+1}, s{S_T+1}, 16")
    e(f"s_add_u32 s{S_SOFF[slot]}, s{S_T+1}, s{S_KVH512}")
    if isA and os.environ.get("NOALOAD"):
        e(f"s_cmp_eq_u32 s{S_CGA}, 0")
        e(f"s_cbranch_scc0 {none}")
    e(f"s_branch {go}")
    e(f"{none}:")
    e(f"s_mov_b32 s{S_SOFF[slot]}, {KV_BYTES}")
    e(f"{go}:")
    for s in range(8):
        r = V_K[slot] + 4 * s
        e(f"buffer_load_dwordx4 v[{r}:{r+3}], v{V_OFFK}, s[{S_K}:{S_K+3}], s{S_SOFF[slot]} offen offset:{s*64}{nt}")


def issue_v(slot, isA):
    nt = NTA if isA else NTB
    e(f"s_add_u32 s{S_VO+1}, s{S_SOFF[slot]}, 0x1000")
    e(f"s_add_u32 s{S_VO+2}, s{S_SOFF[slot]}, 0x2000")
    e(f"s_add_u32 s{S_VO+3}, s{S_SOFF[slot]}, 0x3000")
    for i in range(4):
        so = S_SOFF[slot] if i == 0 else S_VO + i
        for half in range(2):
            r = V_V[slot] + (i * 2 + half) * 4
            e(f"buffer_load_dwordx4 v[{r}:{r+3}], v{V_OFFV}, s[{S_V}:{S_V+3}], s{so} offen offset:{half*256}{nt}")


def issue_poll():
    e(f"v_mov_b32 v{V_T1}, 0")
    e(f"buffer_load_dword v{V_SC}, v{V_T1}, s[{S_DBG}:{S_DBG+3}], s{S_POLL} offen sc1")


def tile(slot, isA):
    K, V = V_K[slot], V_V[slot]
    if not isA:
        np_ = lab("nopoll")
        e(f"s_cmp_lg_u32 s{S_N}, 1")
        e(f"s_cbranch_scc1 {np_}")
        issue_poll()
        e(f"{np_}:")
        if THR:
            nt_ = lab("nothr")
            e(f"s_cmp_eq_u32 s{S_FAST}, 0")
            e(f"s_cbranch_scc1 {nt_}")
            e(f"s_waitcnt vmcnt({THR})")
            e(f"{nt_}:")
    e("s_waitcnt vmcnt(24)")
    for s in range(8):
        c = "0" if s == 0 else f"v[{V_S}:{V_S+3}]"
        e(f"v_mfma_f32_16x16x32_bf16 v[{V_S}:{V_S+3}], v[{K+4*s}:{K+4*s+3}], v[{V_Q+4*s}:{V_Q+4*s+3}], {c}")
    e(f"v_subrev_u32 v{V_T0}, s{S_J16[slot]}, v{V_CTX}")
    issue_k(slot, isA)
    sc = f"v{V_SC}" if isA else f"s{S_SCB}"
    e(f"v_mov_b32 v{V_T1}, {NEG_MASK:#x}")
    e(f"v_cmp_lt_i32 vcc, 0, v{V_T0}")
    e(f"v_mul_f32 v{V_S}, {sc}, v{V_S}")
    e(f"v_mul_f32 v{V_S+1}, {sc}, v{V_S+1}")
    e(f"v_cndmask_b32 v{V_S}, v{V_T1}, v{V_S}, vcc")
    e(f"v_cmp_lt_i32 vcc, 1, v{V_T0}")
    e(f"v_mul_f32 v{V_S+2}, {sc}, v{V_S+2}")
    e(f"v_mul_f32 v{V_S+3}, {sc}, v{V_S+3}")
    e(f"v_cndmask_b32 v{V_S+1}, v{V_T1}, v{V_S+1}, vcc")
    e(f"v_cmp_lt_i32 vcc, 2, v{V_T0}")
    e("s_nop 1")
    e(f"v_cndmask_b32 v{V_S+2}, v{V_T1}, v{V_S+2}, vcc")
    e(f"v_cmp_lt_i32 vcc, 3, v{V_T0}")
    e("s_nop 1")
    e(f"v_cndmask_b32 v{V_S+3}, v{V_T1}, v{V_S+3}, vcc")
    e(f"v_max3_f32 v{V_T0}, v{V_S}, v{V_S+1}, v{V_S+2}")
    e(f"v_max_f32 v{V_T0}, v{V_T0}, v{V_S+3}")
    e(f"v_mov_b32 v{V_T1}, v{V_T0}")
    e("s_nop 1")
    e(f"v_permlane16_swap_b32 v{V_T0}, v{V_T1}")
    e(f"v_max_f32 v{V_T0}, v{V_T0}, v{V_T1}")
    e(f"v_mov_b32 v{V_T1}, v{V_T0}")
    e("s_nop 1")
    e(f"v_permlane32_swap_b32 v{V_T0}, v{V_T1}")
    e(f"v_max3_f32 v{V_T0}, v{V_T0}, v{V_T1}, v{V_M}")
    e(f"v_sub_f32 v{V_T1}, v{V_M}, v{V_T0}")
    e(f"v_exp_f32 v{V_T1}, v{V_T1}")
    e(f"v_mov_b32 v{V_M}, v{V_T0}")
    for r in range(4):
        e(f"v_sub_f32 v{V_S+r}, v{V_S+r}, v{V_T0}")
    for r in range(4):
        e(f"v_exp_f32 v{V_S+r}, v{V_S+r}")
    e(f"v_cmp_neq_f32 vcc, 1.0, v{V_T1}")
    e(f"v_add_f32 v{V_T0}, v{V_S}, v{V_S+1}")
    e(f"v_add_f32 v{V_T0}, v{V_T0}, v{V_S+2}")
    e(f"v_add_f32 v{V_T0}, v{V_T0}, v{V_S+3}")
    e(f"v_fma_f32 v{V_L}, v{V_L}, v{V_T1}, v{V_T0}")
    e(f"v_cvt_pk_bf16_f32 v{V_P}, v{V_S}, v{V_S+1}")
    e(f"v_cvt_pk_bf16_f32 v{V_P+1}, v{V_S+2}, v{V_S+3}")
    skip = lab("nors")
    e(f"s_cbranch_vccz {skip}")
    for r in range(64):
        e(f"v_mul_f32 v{V_ACC+r}, v{V_T1}, v{V_ACC+r}")
    e(f"{skip}:")
    e("s_waitcnt vmcnt(24)")
    n = 0
    pend = []
    for half in range(2):
        for d in range(4):
            t = V_VT + (n % 4) * 4
            n += 1
            T = [V + (i * 2 + half) * 4 + d for i in range(4)]
            e(f"v_perm_b32 v{t}, v{T[1]}, v{T[0]}, s{S_SELLO}")
            e(f"v_perm_b32 v{t+1}, v{T[3]}, v{T[2]}, s{S_SELLO}")
            e(f"v_perm_b32 v{t+2}, v{T[1]}, v{T[0]}, s{S_SELHI}")
            e(f"v_perm_b32 v{t+3}, v{T[3]}, v{T[2]}, s{S_SELHI}")
            for m in pend:
                e(m)
            a0 = V_ACC + (half * 8 + 2 * d) * 4
            a1 = a0 + 4
            pend = [
                f"v_mfma_f32_16x16x16_bf16 v[{a0}:{a0+3}], v[{t}:{t+1}], v[{V_P}:{V_P+1}], v[{a0}:{a0+3}]",
                f"v_mfma_f32_16x16x16_bf16 v[{a1}:{a1+3}], v[{t+2}:{t+3}], v[{V_P}:{V_P+1}], v[{a1}:{a1+3}]",
            ]
    issue_v(slot, isA)
    for m in pend:
        e(m)


def main_loop(isA):
    top, done = lab("loop"), lab("ldone")
    e(f"{top}:")
    tile(0, isA)
    e(f"s_sub_u32 s{S_N}, s{S_N}, 1")
    e(f"s_cmp_eq_u32 s{S_N}, 0")
    e(f"s_cbranch_scc1 {done}")
    tile(1, isA)
    e(f"s_sub_u32 s{S_N}, s{S_N}, 1")
    e(f"s_cmp_lg_u32 s{S_N}, 0")
    e(f"s_cbranch_scc1 {top}")
    e(f"{done}:")


def init_acc():
    for r in range(64):
        e(f"v_mov_b32 v{V_ACC+r}, 0")
    e(f"v_mov_b32 v{V_M}, {M_INIT:#x}")
    e(f"v_mov_b32 v{V_L}, 0")


def group_masks(base_rows, base_row0, act, nact):
    for c in range(4):
        for i in range(4):
            e(f"v_cmp_eq_u32 s[{S_C+2*i}:{S_C+2*i+1}], v{base_rows+4*i+c}, v{base_row0+c}")
        e(f"s_and_b64 s[{S_C}:{S_C+1}], s[{S_C}:{S_C+1}], s[{S_C+2}:{S_C+3}]")
        e(f"s_and_b64 s[{S_C+4}:{S_C+5}], s[{S_C+4}:{S_C+5}], s[{S_C+6}:{S_C+7}]")
        e(f"s_and_b64 s[{S_C}:{S_C+1}], s[{S_C}:{S_C+1}], s[{S_C+4}:{S_C+5}]")
        e(f"s_and_b32 s{S_M+c}, s{S_C}, s{S_C+1}")
    e(f"s_or_b32 s{S_T}, s{S_M}, s{S_M+1}")
    e(f"s_or_b32 s{S_T}, s{S_T}, s{S_M+2}")
    e(f"s_or_b32 s{S_T}, s{S_T}, s{S_M+3}")
    e(f"s_mov_b32 s{act}, 0")
    for c in range(NCH):
        e(f"s_and_b32 s{S_T+1}, s{S_T}, {0xf << (4*c):#x}")
        e(f"s_cselect_b32 s{S_T+1}, {1 << c}, 0")
        e(f"s_or_b32 s{act}, s{act}, s{S_T+1}")
    e(f"s_bcnt1_i32_b32 s{nact}, s{act}")
    e(f"s_mov_b32 s{S_MASK}, s{S_M}")
    for c in range(1, 4):
        e(f"s_cmp_eq_u32 s{S_W}, {c}")
        e(f"s_cselect_b32 s{S_MASK}, s{S_M+c}, s{S_MASK}")


def merge_part1():
    e(f"v_mov_b32 v{V_T1}, v{V_L}")
    e("s_nop 1")
    e(f"v_permlane16_swap_b32 v{V_L}, v{V_T1}")
    e(f"v_add_f32 v{V_L}, v{V_L}, v{V_T1}")
    e(f"v_mov_b32 v{V_T1}, v{V_L}")
    e("s_nop 1")
    e(f"v_permlane32_swap_b32 v{V_L}, v{V_T1}")
    e(f"v_add_f32 v{V_L}, v{V_L}, v{V_T1}")
    lane_into(15)
    e("v_and_b32 v8, 15, v15")
    e("v_lshrrev_b32 v9, 4, v15")
    e("v_lshlrev_b32 v10, 2, v8")
    e(f"s_lshl_b32 s{S_T}, s{S_W}, 7")
    e(f"v_add_u32 v11, s{S_T}, v10")
    e(f"ds_write_b32 v11, v{V_M} offset:{LDS_ML}")
    e(f"ds_write_b32 v11, v{V_L} offset:{LDS_ML+64}")
    e("s_waitcnt lgkmcnt(0)")
    e("s_barrier")
    for w in range(4):
        e(f"ds_read_b32 v{16+w}, v10 offset:{LDS_ML+128*w}")
        e(f"ds_read_b32 v{20+w}, v10 offset:{LDS_ML+128*w+64}")
    e("s_waitcnt lgkmcnt(0)")
    e("v_max3_f32 v12, v16, v17, v18")
    e("v_max_f32 v12, v12, v19")
    for w in range(4):
        e(f"v_sub_f32 v{16+w}, v{16+w}, v12")
    e(f"v_sub_f32 v13, v{V_M}, v12")
    for w in range(4):
        e(f"v_exp_f32 v{16+w}, v{16+w}")
    e("v_exp_f32 v13, v13")
    e("v_mul_f32 v14, v16, v20")
    e("v_fma_f32 v14, v17, v21, v14")
    e("v_fma_f32 v14, v18, v22, v14")
    e("v_fma_f32 v14, v19, v23, v14")


def merge_part2(only2):
    e(f"ds_write_b32 v10, v12 offset:{LDS_FML}")
    e(f"ds_write_b32 v10, v14 offset:{LDS_FML+64}")
    if only2:
        e("v_cmp_gt_u32 vcc, 2, v8")
        e(f"s_and_saveexec_b64 s[{S_C}:{S_C+1}], vcc")
    for r in range(64):
        e(f"v_mul_f32 v{V_ACC+r}, v13, v{V_ACC+r}")
    e(f"s_mul_i32 s{S_T}, s{S_W}, {WSTR}")
    e(f"v_mul_u32_u24 v11, {CSTR}, v8")
    e("v_lshl_add_u32 v11, v9, 4, v11")
    e(f"v_add_u32 v11, s{S_T}, v11")
    for a in range(16):
        e(f"ds_write_b128 v11, v[{V_ACC+4*a}:{V_ACC+4*a+3}] offset:{LDS_O+a*64}")
    if only2:
        e(f"s_mov_b64 exec, s[{S_C}:{S_C+1}]")


def final_thread_map():
    e("v_mov_b32 v25, 0")
    e("v_and_b32 v24, 15, v15")
    e("v_lshrrev_b32 v26, 4, v15")
    e(f"s_and_b32 s{S_T}, s{S_W}, 1")
    e(f"s_lshl_b32 s{S_T+1}, s{S_T}, 9")
    e("v_lshlrev_b32 v27, 7, v26")
    e("v_lshl_add_u32 v24, v24, 2, v27")
    e(f"v_add_u32 v24, s{S_T+1}, v24")
    e("v_and_b32 v27, 3, v15")
    e("v_lshlrev_b32 v27, 4, v27")
    e("v_lshl_add_u32 v27, v26, 2, v27")
    e("v_bfe_u32 v26, v15, 2, 2")
    e("v_lshl_add_u32 v26, v26, 6, v27")
    e(f"s_lshl_b32 s{S_T+1}, s{S_T}, 8")
    e(f"v_add_u32 v26, s{S_T+1}, v26")


def issue_partial_loads(act):
    e(f"s_and_b32 s{S_T2}, s{S_FB}, 7")
    e(f"s_lshl_b32 s{S_T2}, s{S_T2}, 1")
    e(f"s_add_u32 s{S_T2}, s{S_T2}, s{S_COL2}")
    e(f"s_lshl_b32 s{S_T2+1}, s{S_KVH}, 2")
    e(f"s_add_u32 s{S_T2+1}, s{S_T2+1}, s{S_FGRP}")
    e(f"s_lshl_b32 s{S_T2+1}, s{S_T2+1}, 18")
    e(f"s_lshl_b32 s{S_T2+2}, s{S_T2}, 10")
    e(f"s_add_u32 s{S_T2+2}, s{S_T2+2}, s{S_T2+1}")
    e(f"s_lshl_b32 s{S_T2+3}, s{S_T2}, 2")
    e(f"s_add_u32 s{S_T2+3}, s{S_T2+3}, s{S_T2+1}")
    e(f"s_add_u32 s{S_T2+3}, s{S_T2+3}, 0x4000")
    for c in range(NCH):
        r = 32 + 4 * c
        ina, nxt = lab("ina"), lab("nxt")
        e(f"s_bitcmp1_b32 s{act}, {c}")
        e(f"s_cbranch_scc0 {ina}")
        e(f"buffer_load_dword v{r}, v24, s[{S_WS}:{S_WS+3}], s{S_T2+2} offen sc1")
        e(f"buffer_load_dword v{r+1}, v24, s[{S_WS}:{S_WS+3}], s{S_T2+2} offen offset:64 sc1")
        e(f"buffer_load_dword v{r+2}, v25, s[{S_WS}:{S_WS+3}], s{S_T2+3} offen sc1")
        e(f"buffer_load_dword v{r+3}, v25, s[{S_WS}:{S_WS+3}], s{S_T2+3} offen offset:64 sc1")
        e(f"s_branch {nxt}")
        e(f"{ina}:")
        e(f"v_mov_b32 v{r}, 0")
        e(f"v_mov_b32 v{r+1}, 0")
        e(f"v_mov_b32 v{r+2}, {M_INIT:#x}")
        e(f"v_mov_b32 v{r+3}, 0")
        e(f"{nxt}:")
        if c < NCH - 1:
            e(f"s_add_u32 s{S_T2+2}, s{S_T2+2}, {SLOT}")
            e(f"s_add_u32 s{S_T2+3}, s{S_T2+3}, {SLOT}")


def final_combine():
    e("s_waitcnt vmcnt(0)")
    e("v_max3_f32 v27, v22, v34, v38")
    e("v_max3_f32 v27, v27, v42, v46")
    e("v_max3_f32 v27, v27, v50, v54")
    e("v_max3_f32 v27, v27, v58, v62")
    e("v_sub_f32 v22, v22, v27")
    for c in range(NCH):
        e(f"v_sub_f32 v{34+4*c}, v{34+4*c}, v27")
    e("v_exp_f32 v22, v22")
    for c in range(NCH):
        e(f"v_exp_f32 v{34+4*c}, v{34+4*c}")
    e("s_nop 0")
    e("v_mul_f32 v20, v20, v22")
    e("v_mul_f32 v21, v21, v22")
    e("v_mul_f32 v23, v23, v22")
    for c in range(NCH):
        e(f"v_fma_f32 v20, v{32+4*c}, v{34+4*c}, v20")
        e(f"v_fma_f32 v21, v{33+4*c}, v{34+4*c}, v21")
        e(f"v_fma_f32 v23, v{35+4*c}, v{34+4*c}, v23")
    e("v_rcp_f32 v23, v23")
    e("s_nop 0")
    e("v_mul_f32 v20, v20, v23")
    e("v_mul_f32 v21, v21, v23")
    e("v_cvt_pk_bf16_f32 v20, v20, v21")
    e(f"s_lshl_b32 s{S_T2}, s{S_FB}, 4")
    e(f"s_lshl_b32 s{S_T2+1}, s{S_KVH}, 1")
    e(f"s_add_u32 s{S_T2}, s{S_T2}, s{S_T2+1}")
    e(f"s_add_u32 s{S_T2}, s{S_T2}, s{S_COL2}")
    e(f"s_lshl_b32 s{S_T2}, s{S_T2}, 9")
    e(f"buffer_store_dword v20, v26, s[{S_OUT}:{S_OUT+3}], s{S_T2} offen")


def b_prefetch():
    lane_into(16)
    e("v_and_b32 v17, 1, v16")
    e("v_lshrrev_b32 v18, 4, v16")
    e("v_lshlrev_b32 v17, 9, v17")
    e("v_lshl_add_u32 v17, v18, 4, v17")
    e(f"s_lshl_b32 s{S_T}, s{S_B}, 13")
    e(f"s_lshl_b32 s{S_T+1}, s{S_KVH}, 10")
    e(f"s_add_u32 s{S_T}, s{S_T}, s{S_T+1}")
    for s in range(8):
        e(f"buffer_load_dwordx4 v[{V_Q+4*s}:{V_Q+4*s+3}], v17, s[{S_Q}:{S_Q+3}], s{S_T} offen offset:{s*64}")
    e("v_lshlrev_b32 v18, 2, v18")
    e(f"v_sub_u32 v{V_CTX}, s{S_CTXB}, v18")
    e(f"s_mov_b32 s{S_MASK}, s{S_MASKB}")
    issue_k(0, False)
    issue_v(0, False)
    issue_k(1, False)
    issue_v(1, False)


def gen():
    hdr = open(OUT + ".ref").read().split("; Override launch geometry")[0]
    L.append(hdr.rstrip())
    L.append("; Override launch geometry by editing the next line (default: block=256,")
    L.append(f"; @launch grid=({NWG},1,1) block=(256,1,1) lds={LDS_BYTES}")
    L.append('.amdgcn_target "amdgcn-amd-amdhsa--gfx950"')
    L.append(".text")
    L.append(f".globl {NAME}")
    L.append(".p2align 8")
    L.append(f".type {NAME},@function")
    L.append(f"{NAME}:")
    e(f"s_cmp_ge_u32 s2, {NWG}")
    e("s_cbranch_scc1 L_end")
    e("s_load_dwordx16 s[4:19], s[0:1], 0")
    e("v_lshrrev_b32 v1, 6, v0")
    e("v_and_b32 v15, 63, v0")
    e(f"v_readfirstlane_b32 s{S_W}, v1")
    if os.environ.get("MAP1"):
        e(f"s_lshr_b32 s{S_KVH}, s2, 5")
        e(f"s_and_b32 s{S_B}, s2, 31")
    else:
        e(f"s_and_b32 s{S_KVH}, s2, 7")
        e(f"s_lshr_b32 s{S_B}, s2, 3")
    e(f"s_lshr_b32 s{S_GRP}, s{S_B}, 3")
    e(f"s_lshl_b32 s{S_KVH512}, s{S_KVH}, 9")
    e(f"s_mov_b32 s{S_SELLO}, 0x05040100")
    e(f"s_mov_b32 s{S_SELHI}, 0x07060302")
    e(f"s_lshl_b32 s{S_W16}, s{S_W}, 4")
    e(f"s_lshr_b32 s{S_COL2}, s{S_W}, 1")
    e(f"s_lshl_b32 s{S_POLL}, s{S_B}, 3")
    e(f"s_add_u32 s{S_POLL}, s{S_POLL}, s{S_KVH}")
    e(f"s_and_b32 s{S_POLL}, s{S_POLL}, 0xfc")
    e("v_and_b32 v8, 15, v15")
    e("v_lshrrev_b32 v9, 4, v15")
    e(f"v_lshlrev_b32 v{V_OFFK}, 12, v8")
    e(f"v_lshl_add_u32 v{V_OFFK}, v9, 4, v{V_OFFK}")
    e(f"v_lshlrev_b32 v{V_OFFV}, 14, v9")
    e(f"v_lshl_add_u32 v{V_OFFV}, v8, 4, v{V_OFFV}")
    e("v_lshlrev_b32 v12, 2, v15")
    e("v_and_b32 v13, 31, v15")
    e("v_lshrrev_b32 v14, 5, v15")
    e("v_lshlrev_b32 v13, 4, v13")
    e("v_lshl_add_u32 v14, v14, 9, v13")
    e(f"s_lshl_b32 s{S_T}, s{S_GRP}, 12")
    e(f"s_lshl_b32 s{S_VO}, s{S_B}, 9")
    e(f"s_lshl_b32 s{S_VO+1}, s{S_W}, 2")
    e(f"s_add_u32 s{S_VO}, s{S_VO}, s{S_VO+1}")
    e("s_waitcnt lgkmcnt(0)")
    srd(S_CTX, 12, 128)
    srd(S_BT, 10, 16384)
    e(f"buffer_load_dword v10, v12, s[{S_CTX}:{S_CTX+3}], 0 offen")
    e(f"buffer_load_dword v{V_PHYSB}, v13, s[{S_BT}:{S_BT+3}], s{S_VO} offen")
    R0, RR, RP = 128, 144, 208
    for g in range(4):
        e(f"s_mov_b32 s{S_T}, {g*4096}")
        e(f"s_add_u32 s{S_T+1}, s{S_VO+1}, {g*4096}")
        e(f"buffer_load_dwordx4 v[{R0+4*g}:{R0+4*g+3}], v13, s[{S_BT}:{S_BT+3}], s{S_T} offen")
        for i in range(4):
            r = RR + 16 * g + 4 * i
            e(f"buffer_load_dwordx4 v[{r}:{r+3}], v14, s[{S_BT}:{S_BT+3}], s{S_T} offen offset:{i*1024}")
        e(f"buffer_load_dword v{RP+g}, v13, s[{S_BT}:{S_BT+3}], s{S_T+1} offen")
    srd(S_Q, 4, 262144)
    srd(S_K, 6, KV_BYTES)
    srd(S_V, 8, KV_BYTES)
    srd(S_OUT, 14, 262144)
    srd(S_DBG, 16, 256)
    srd(S_WS, 18, WS_BYTES)
    init_acc()
    e(f"s_mov_b32 s{S_LAST}, 0")
    stamp(0)
    e("s_waitcnt vmcnt(26)" if STAMP else "s_waitcnt vmcnt(25)")
    e(f"v_readlane_b32 s{S_T2}, v10, s{S_B}")
    e(f"s_bfm_b32 s{S_T2+1}, s{S_B}, 0")
    e("s_nop 1")
    e(f"v_cmp_gt_i32 s[{S_C}:{S_C+1}], s{S_T2}, v10")
    e(f"v_cmp_eq_u32 s[{S_C+2}:{S_C+3}], s{S_T2}, v10")
    e(f"s_and_b32 s{S_C+2}, s{S_C+2}, s{S_T2+1}")
    e(f"s_or_b32 s{S_C}, s{S_C}, s{S_C+2}")
    e(f"s_bcnt1_i32_b32 s{S_T}, s{S_C}")
    e(f"s_lshr_b32 s{S_CHA}, s{S_T}, 2")
    e(f"s_and_b32 s{S_CGA}, s{S_T}, 3")
    e(f"s_min_i32 s{S_CTXB}, s{S_T2}, 0x800")
    e(f"s_cmp_gt_i32 s{S_T2}, 0")
    e(f"s_cselect_b32 s{S_CTXB}, s{S_CTXB}, 0x800")
    e(f"s_cselect_b32 s{S_SCB}, {SCALE:#x}, 0")
    e("v_lshrrev_b32 v11, 1, v8")
    e(f"s_lshl_b32 s{S_T}, s{S_CGA}, 3")
    e(f"v_add_u32 v12, s{S_T}, v11")
    e("v_lshlrev_b32 v12, 2, v12")
    e(f"ds_bpermute_b32 v{V_CTX}, v12, v10")
    e("v_and_b32 v12, 1, v8")
    e("v_lshlrev_b32 v11, 13, v11")
    e("v_lshl_add_u32 v11, v12, 9, v11")
    e("v_lshl_add_u32 v11, v9, 4, v11")
    e("s_waitcnt vmcnt(0)")

    def select_group(sreg, phys):
        done = lab("seldone")
        for g in range(4):
            nxt = lab("selnext")
            if g < 3:
                e(f"s_cmp_eq_u32 s{sreg}, {g}")
                e(f"s_cbranch_scc0 {nxt}")
            for k in range(4):
                e(f"v_mov_b32 v{232+k}, v{R0+4*g+k}")
            for k in range(16):
                e(f"v_mov_b32 v{216+k}, v{RR+16*g+k}")
            if phys:
                e(f"v_mov_b32 v{V_PHYSA}, v{RP+g}")
            if g < 3:
                e(f"s_branch {done}")
                e(f"{nxt}:")
        e(f"{done}:")

    select_group(S_GRP, False)
    group_masks(216, 232, S_ACT, S_NACT)
    e(f"s_add_u32 s{S_T2}, s{S_CTXB}, 15")
    e(f"s_lshr_b32 s{S_T2}, s{S_T2}, 4")
    e(f"s_sub_u32 s{S_T2}, s{S_T2}, s{S_W}")
    e(f"s_add_u32 s{S_T2}, s{S_T2}, 3")
    e(f"s_lshr_b32 s{S_T2}, s{S_T2}, 2")
    e(f"s_bfm_b64 s[{S_T}:{S_T+1}], s{S_T2}, 0")
    e(f"s_andn2_b32 s{S_MASKB}, s{S_T}, s{S_MASK}")
    select_group(S_CGA, True)
    group_masks(216, 232, S_ACTA, S_NACTA)
    e("s_waitcnt lgkmcnt(0)")
    e(f"s_lshr_b32 s{S_T}, s{S_ACTA}, s{S_CHA}")
    e(f"s_and_b32 s{S_T}, s{S_T}, 1")
    e("s_cbranch_scc0 L_noA")
    stamp(1)
    e(f"s_lshl_b32 s{S_T}, s{S_CGA}, 16")
    e(f"s_lshl_b32 s{S_T+1}, s{S_KVH}, 10")
    e(f"s_add_u32 s{S_T}, s{S_T}, s{S_T+1}")
    for s_ in range(8):
        e(f"buffer_load_dwordx4 v[{V_Q+4*s_}:{V_Q+4*s_+3}], v11, s[{S_Q}:{S_Q+3}], s{S_T} offen offset:{s_*64}")
    e(f"s_lshl_b32 s{S_T}, s{S_CHA}, 2")
    e(f"s_lshl_b32 s{S_T}, 0xf, s{S_T}")
    e(f"s_and_b32 s{S_MASK}, s{S_MASK}, s{S_T}")
    e(f"s_bcnt1_i32_b32 s{S_N}, s{S_MASK}")
    e(f"v_cmp_lt_i32 vcc, 0, v{V_CTX}")
    e(f"v_min_i32 v12, 0x800, v{V_CTX}")
    e("v_mov_b32 v13, 0x800")
    e("v_cndmask_b32 v12, v13, v12, vcc")
    e(f"v_mov_b32 v13, {SCALE:#x}")
    e(f"v_cndmask_b32 v{V_SC}, 0, v13, vcc")
    e("v_lshlrev_b32 v9, 2, v9")
    e(f"v_sub_u32 v{V_CTX}, v12, v9")
    e(f"s_cmp_eq_u32 s{S_N}, 0")
    e("s_cbranch_scc1 L_A_loopdone")
    issue_k(0, True)
    issue_v(0, True)
    issue_k(1, True)
    issue_v(1, True)
    main_loop(True)
    e("L_A_loopdone:")
    e("s_waitcnt vmcnt(0)")
    stamp(2)
    b_prefetch()
    merge_part1()
    merge_part2(False)
    e("s_waitcnt lgkmcnt(0)")
    e("s_barrier")
    e(f"s_lshl_b32 s{S_T}, s{S_W}, 10")
    e("v_lshlrev_b32 v11, 4, v15")
    e(f"s_mul_i32 s{S_T+1}, s{S_W}, {CSTR}")
    e(f"v_add_u32 v12, s{S_T+1}, v11")
    e(f"v_add_u32 v11, s{S_T}, v11")
    e(f"s_lshl_b32 s{S_T}, s{S_KVH}, 2")
    e(f"s_add_u32 s{S_T}, s{S_T}, s{S_CGA}")
    e(f"s_lshl_b32 s{S_T}, s{S_T}, 3")
    e(f"s_add_u32 s{S_T}, s{S_T}, s{S_CHA}")
    e(f"s_lshl_b32 s{S_T}, s{S_T}, 15")
    for q in range(4):
        for w in range(4):
            e(f"ds_read_b128 v[{64+16*q+4*w}:{67+16*q+4*w}], v12 offset:{LDS_O+w*WSTR+q*4*CSTR}")
    e("v_lshlrev_b32 v10, 2, v15")
    e(f"ds_read_b32 v28, v10 offset:{LDS_FML}")
    e("s_waitcnt lgkmcnt(0)")
    for q in range(4):
        b = 64 + 16 * q
        for k in range(4):
            e(f"v_add_f32 v{b+k}, v{b+k}, v{b+4+k}")
            e(f"v_add_f32 v{b+8+k}, v{b+8+k}, v{b+12+k}")
        for k in range(4):
            e(f"v_add_f32 v{b+k}, v{b+k}, v{b+8+k}")
        e(f"s_add_u32 s{S_T+1}, s{S_T}, {q*4096}")
        e(f"buffer_store_dwordx4 v[{b}:{b+3}], v11, s[{S_WS}:{S_WS+3}], s{S_T+1} offen sc1")
    e(f"s_add_u32 s{S_T+1}, s{S_T}, 0x4000")
    e(f"s_cmp_lg_u32 s{S_W}, 0")
    e("s_cbranch_scc1 L_A_noml")
    e("v_cmp_gt_u32 vcc, 32, v15")
    e(f"s_and_saveexec_b64 s[{S_C}:{S_C+1}], vcc")
    e(f"buffer_store_dword v28, v10, s[{S_WS}:{S_WS+3}], s{S_T+1} offen sc1")
    e(f"s_mov_b64 exec, s[{S_C}:{S_C+1}]")
    e("L_A_noml:")
    e("s_waitcnt vmcnt(0)")
    e("s_barrier")
    init_acc()
    e(f"s_cmp_lg_u32 s{S_W}, 0")
    e("s_cbranch_scc1 L_B_start")
    lane_into(15)
    e(f"s_and_b32 s{S_T2}, s{S_KVH}, 3")
    e(f"s_lshl_b32 s{S_T2}, s{S_T2}, 3")
    e(f"s_lshl_b32 s{S_T}, 1, s{S_T2}")
    e(f"v_mov_b32 v28, s{S_T}")
    e(f"s_and_b32 s{S_T}, s{S_KVH}, 4")
    e(f"s_lshl_b32 s{S_T+1}, s{S_CGA}, 6")
    e(f"s_add_u32 s{S_T}, s{S_T}, s{S_T+1}")
    e("v_lshlrev_b32 v10, 3, v15")
    e("v_cmp_gt_u32 vcc, 8, v15")
    e(f"s_and_saveexec_b64 s[{S_C}:{S_C+1}], vcc")
    e(f"buffer_atomic_add v28, v10, s[{S_DBG}:{S_DBG+3}], s{S_T} offen sc0 sc1")
    e("s_waitcnt vmcnt(0)")
    e(f"v_lshrrev_b32 v28, s{S_T2}, v28")
    e("v_and_b32 v28, 0xff, v28")
    e(f"v_cmp_eq_u32 vcc, s{S_NACTA}, v28")
    e(f"s_mov_b64 exec, s[{S_C}:{S_C+1}]")
    e(f"s_and_b32 s{S_LAST}, vcc_lo, 0xff")
    e("s_branch L_B_start")
    e("L_noA:")
    stamp(1)
    b_prefetch()
    e("L_B_start:")
    e(f"s_bcnt1_i32_b32 s{S_N}, s{S_MASKB}")
    e(f"s_cmp_lg_u32 s{S_N}, 0")
    e("s_cbranch_scc1 L_B_go")
    issue_poll()
    e("s_branch L_B_loopdone")
    e("L_B_go:")
    main_loop(False)
    e("L_B_loopdone:")
    e("s_waitcnt vmcnt(0)")
    stamp(3)
    e(f"s_mov_b32 s{S_FB}, s{S_B}")
    e(f"s_mov_b32 s{S_FGRP}, s{S_GRP}")
    e(f"s_mov_b32 s{S_FAST}, 1")
    lane_into(15)
    final_thread_map()
    e(f"s_cmp_eq_u32 s{S_NACT}, 0")
    e("s_cbranch_scc1 L_B_early")
    e(f"v_readfirstlane_b32 s{S_T}, v{V_SC}")
    e(f"s_and_b32 s{S_T2+2}, s{S_KVH}, 3")
    e(f"s_lshl_b32 s{S_T2+2}, s{S_T2+2}, 3")
    e(f"s_lshr_b32 s{S_T}, s{S_T}, s{S_T2+2}")
    e(f"s_and_b32 s{S_T}, s{S_T}, 0xff")
    e(f"s_cmp_eq_u32 s{S_T}, s{S_NACT}")
    e(f"s_cselect_b32 s{S_FAST}, 1, 0")
    e("s_cbranch_scc0 L_B_noearly")
    e("L_B_early:")
    issue_partial_loads(S_ACT)
    e("L_B_noearly:")
    merge_part1()
    merge_part2(True)
    e(f"v_mov_b32 v12, s{S_FAST}")
    e(f"s_lshl_b32 s{S_T}, s{S_W}, 2")
    e(f"v_mov_b32 v13, s{S_T}")
    e(f"ds_write_b32 v13, v12 offset:{LDS_FLAG}")
    e(f"s_cmp_lg_u32 s{S_W}, 0")
    e("s_cbranch_scc1 L_B_nolast")
    e(f"v_mov_b32 v12, s{S_LAST}")
    e(f"ds_write_b32 v25, v12 offset:{LDS_LAST}")
    e("L_B_nolast:")
    e("s_waitcnt lgkmcnt(0)")
    e("s_barrier")
    e(f"s_lshl_b32 s{S_T}, s{S_COL2}, 10")
    e(f"v_add_u32 v11, s{S_T}, v24")
    e(f"s_lshl_b32 s{S_T}, s{S_COL2}, 2")
    e(f"v_mov_b32 v10, s{S_T}")
    e(f"s_mul_i32 s{S_T}, s{S_COL2}, {CSTR}")
    e(f"v_add_u32 v76, s{S_T}, v24")
    for w in range(4):
        e(f"v_add_u32 v{72+w}, {LDS_O+WSTR*w}, v76")
    for w in range(4):
        e(f"ds_read2_b32 v[{64+2*w}:{65+2*w}], v{72+w} offset0:0 offset1:16")
    e(f"ds_read_b32 v22, v10 offset:{LDS_FML}")
    e(f"ds_read_b32 v23, v10 offset:{LDS_FML+64}")
    e(f"ds_read_b128 v[28:31], v25 offset:{LDS_FLAG}")
    e(f"ds_read_b32 v16, v25 offset:{LDS_LAST}")
    e("s_waitcnt lgkmcnt(0)")
    e("v_and_b32 v28, v28, v29")
    e("v_and_b32 v30, v30, v31")
    e("v_and_b32 v28, v28, v30")
    e("v_add_f32 v20, v64, v66")
    e(f"v_readfirstlane_b32 s{S_FAST}, v28")
    e(f"v_readfirstlane_b32 s{S_LAST}, v16")
    e("v_add_f32 v21, v65, v67")
    e("v_add_f32 v20, v20, v68")
    e("v_add_f32 v21, v21, v69")
    e("v_add_f32 v20, v20, v70")
    e("v_add_f32 v21, v21, v71")
    e(f"s_cmp_eq_u32 s{S_FAST}, 1")
    e("s_cbranch_scc1 L_B_final")
    e(f"s_lshl_b32 s{S_T}, s{S_B}, 3")
    e(f"s_add_u32 s{S_T}, s{S_T}, s{S_KVH}")
    e(f"s_lshl_b32 s{S_T}, s{S_T}, 12")
    e(f"s_add_u32 s{S_T}, s{S_T}, {BSLOT_BASE}")
    e(f"buffer_store_dword v20, v11, s[{S_WS}:{S_WS+3}], s{S_T} offen sc1")
    e(f"buffer_store_dword v21, v11, s[{S_WS}:{S_WS+3}], s{S_T} offen offset:64 sc1")
    e(f"buffer_store_dword v22, v10, s[{S_WS}:{S_WS+3}], s{S_T} offen offset:2048 sc1")
    e(f"buffer_store_dword v23, v10, s[{S_WS}:{S_WS+3}], s{S_T} offen offset:2112 sc1")
    e("s_waitcnt vmcnt(0)")
    e("s_barrier")
    e(f"s_cmp_lg_u32 s{S_W}, 0")
    e("s_cbranch_scc1 L_B_noatom")
    e(f"s_lshl_b32 s{S_T2}, s{S_B}, 3")
    e(f"s_add_u32 s{S_T2}, s{S_T2}, s{S_KVH}")
    e(f"s_and_b32 s{S_T2+1}, s{S_T2}, 0xfc")
    e(f"s_and_b32 s{S_T2+2}, s{S_T2}, 3")
    e(f"s_lshl_b32 s{S_T2+2}, s{S_T2+2}, 3")
    e(f"s_lshl_b32 s{S_T}, 1, s{S_T2+2}")
    e(f"v_mov_b32 v28, s{S_T}")
    e("v_cmp_eq_u32 vcc, 0, v15")
    e(f"s_and_saveexec_b64 s[{S_C}:{S_C+1}], vcc")
    e(f"buffer_atomic_add v28, v25, s[{S_DBG}:{S_DBG+3}], s{S_T2+1} offen sc0 sc1")
    e("s_waitcnt vmcnt(0)")
    e(f"v_lshrrev_b32 v28, s{S_T2+2}, v28")
    e("v_and_b32 v28, 0xff, v28")
    e(f"ds_write_b32 v25, v28 offset:{LDS_VERD}")
    e(f"s_mov_b64 exec, s[{S_C}:{S_C+1}]")
    e("L_B_noatom:")
    e("s_waitcnt lgkmcnt(0)")
    e("s_barrier")
    e(f"ds_read_b32 v28, v25 offset:{LDS_VERD}")
    e("s_waitcnt lgkmcnt(0)")
    e(f"v_readfirstlane_b32 s{S_T}, v28")
    e("s_nop 1")
    e(f"s_cmp_lg_u32 s{S_T}, s{S_NACT}")
    e("s_cbranch_scc1 L_lastloop")
    issue_partial_loads(S_ACT)
    e("L_B_final:")
    final_combine()
    stamp(4)
    e("L_lastloop:")
    e(f"s_cmp_eq_u32 s{S_LAST}, 0")
    e("s_cbranch_scc1 L_end")
    e(f"s_ff1_i32_b32 s{S_T}, s{S_LAST}")
    e(f"s_bitset0_b32 s{S_LAST}, s{S_T}")
    e(f"s_lshl_b32 s{S_FB}, s{S_CGA}, 3")
    e(f"s_add_u32 s{S_FB}, s{S_FB}, s{S_T}")
    e(f"s_mov_b32 s{S_FGRP}, s{S_CGA}")
    e(f"s_lshl_b32 s{S_T}, s{S_FB}, 3")
    e(f"s_add_u32 s{S_T}, s{S_T}, s{S_KVH}")
    e(f"s_lshl_b32 s{S_T}, s{S_T}, 12")
    e(f"s_add_u32 s{S_T}, s{S_T}, {BSLOT_BASE}")
    e(f"s_lshl_b32 s{S_T+1}, s{S_COL2}, 10")
    e(f"v_add_u32 v11, s{S_T+1}, v24")
    e(f"s_lshl_b32 s{S_T+1}, s{S_COL2}, 2")
    e(f"v_mov_b32 v10, s{S_T+1}")
    e("s_waitcnt vmcnt(0)")
    e(f"buffer_load_dword v20, v11, s[{S_WS}:{S_WS+3}], s{S_T} offen sc1")
    e(f"buffer_load_dword v21, v11, s[{S_WS}:{S_WS+3}], s{S_T} offen offset:64 sc1")
    e(f"buffer_load_dword v22, v10, s[{S_WS}:{S_WS+3}], s{S_T} offen offset:2048 sc1")
    e(f"buffer_load_dword v23, v10, s[{S_WS}:{S_WS+3}], s{S_T} offen offset:2112 sc1")
    issue_partial_loads(S_ACTA)
    final_combine()
    e("s_branch L_lastloop")
    e("L_end:")
    e("s_endpgm")
    L.append('.section .rodata,"a"')
    L.append(".p2align 6")
    L.append(f".amdhsa_kernel {NAME}")
    L.append("  .amdhsa_next_free_vgpr 256")
    L.append(f"  .amdhsa_next_free_sgpr {NSGPR}")
    L.append("  .amdhsa_accum_offset 256")
    L.append("  .amdhsa_group_segment_fixed_size 0")
    L.append("  .amdhsa_kernarg_size 64")
    L.append("  .amdhsa_user_sgpr_count 2")
    L.append("  .amdhsa_user_sgpr_kernarg_segment_ptr 1")
    L.append("  .amdhsa_system_sgpr_workgroup_id_x 1")
    L.append(".end_amdhsa_kernel")
    open(OUT, "w").write("\n".join(L) + "\n")


gen()
```
